```python
import torch

def _softmax(x, axis=-1):
    return torch.softmax(x, dim=axis)

def _gelu(x):
    return torch.nn.functional.gelu(x, approximate='tanh')

def _silu(x):
    return torch.nn.functional.silu(x)

def _sigmoid(x):
    return torch.sigmoid(x)

def _layernorm(x, axis=-1, eps=1e-05):
    m = x.mean(dim=axis, keepdim=True)
    v = x.var(dim=axis, keepdim=True, unbiased=False)
    return (x - m) / torch.sqrt(v + eps)

def _scatter_add(tgt, idx, src, axis=0):
    return tgt.clone().index_add_(axis, idx, src)

def _segment_sum(src, seg, n):
    out = torch.zeros((n,) + src.shape[1:], dtype=src.dtype)
    return out.index_add_(0, seg, src)

def _pad(x, pw):
    flat = tuple((v for pair in reversed(pw) for v in pair))
    return torch.nn.functional.pad(x, flat)
kernel_name = 'standalone__tree_speculative_verify_tree_attention_over_candidate_token_tree__sampling'

def setup_inputs():

    _w = lambda a: (lambda t: t.to(torch.bfloat16) if t.is_floating_point() else t)(torch.as_tensor(a))
    B, Hq, Hkv, T, C, D = (16, 32, 8, 32, 4096, 128)
    tree_mask = torch.zeros((B, T, T), dtype=float)
    for b in range(B):
        parent = torch.zeros(T, dtype=torch.int64)
        for i in range(1, T):
            parent[i] = int(torch.randint(0, i, (1,)).item())
        for i in range(T):
            j = i
            tree_mask[b, i, j] = 1.0
            while j > 0:
                j = parent[j]
                tree_mask[b, i, j] = 1.0
    return {'q': _w((lambda *s: torch.randn(*s, dtype=torch.bfloat16) * 0.8)(B, Hq, T, D)), 'k_cache': _w((lambda *s: torch.randn(*s, dtype=torch.bfloat16) * 0.8)(B, Hkv, C, D)), 'v_cache': _w((lambda *s: torch.randn(*s, dtype=torch.bfloat16) * 0.05)(B, Hkv, C, D)), 'k_tree': _w((lambda *s: torch.randn(*s, dtype=torch.bfloat16) * 0.8)(B, Hkv, T, D)), 'v_tree': _w((lambda *s: torch.randn(*s, dtype=torch.bfloat16) * 0.05)(B, Hkv, T, D)), 'tree_mask': _w(tree_mask)}

def reference(q, k_cache, v_cache, k_tree, v_tree, tree_mask):
    B, Hq, T, D = q.shape
    Hkv, C = (k_cache.shape[1], k_cache.shape[2])
    rep = Hq // Hkv
    kc = (lambda x, n, axis: torch.repeat_interleave(x, n, dim=axis))(k_cache, rep, axis=1)
    vc = (lambda x, n, axis: torch.repeat_interleave(x, n, dim=axis))(v_cache, rep, axis=1)
    kt = (lambda x, n, axis: torch.repeat_interleave(x, n, dim=axis))(k_tree, rep, axis=1)
    vt = (lambda x, n, axis: torch.repeat_interleave(x, n, dim=axis))(v_tree, rep, axis=1)
    k = torch.concatenate([kc, kt], axis=2)
    v = torch.concatenate([vc, vt], axis=2)
    scale = D ** (-0.5)
    scores = torch.einsum('bhqd,bhkd->bhqk', q, k) * scale
    ctx_mask = torch.ones((B, 1, T, C), dtype=scores.dtype)
    tm = tree_mask[:, None, :, :].clone()
    full_mask = torch.concatenate([ctx_mask, tm], axis=-1)
    scores = scores + (1.0 - full_mask) * -1000000000.0
    p = _softmax(scores, axis=-1)
    return torch.einsum('bhqk,bhkd->bhqd', p, v)
```

```python
import sys, math, struct
KNAME = "standalone__tree_speculative_verify_tree_attention_over_candidate_token_tree__sampling_kernel"
HDR = open('standalone__tree_speculative_verify_tree_attention_over_candidate_token_tree__sampling.s.ref').read().split('; Override launch')[0] if False else None

def f2u(x): return struct.unpack('<I', struct.pack('<f', x))[0]

class Asm:
    def __init__(self): self.L = []
    def __call__(self, s): self.L.append(s)
    def label(self, s): self.L.append(s + ":")
    def text(self): return "\n".join(("    " + l if not l.endswith(":") and not l.startswith(";") and not l.startswith(".") else l) for l in self.L) + "\n"

def interleave(mf, fill, lead=0):
    out = []
    n = len(mf)
    k = len(fill)
    idx = 0
    for i, m in enumerate(mf):
        out.append(m)
        tgt = (k * (i + 1)) // n
        while idx < tgt:
            f = fill[idx]
            out.extend(f if isinstance(f, list) else [f])
            idx += 1
    return out

def gen(W=24, NS=7, ldflags='nt', vflags=None, qflags='nt', stflags='', diag=0, thr=1024.0, vpos=0.55, treehalf=0):
    A = Asm()
    KRING = 0
    VRING = NS * 8192
    STAGE = 2 * NS * 8192
    CTL = STAGE + 4 * 8192
    LDS = CTL + 64
    OUTBOX = 1 << 20
    OB_WAVE = 16896
    FLAGS = 32 << 20
    SPIN = 1 << 22
    A(f"; @launch grid=(256,1,1) block=(320,1,1) lds={LDS}")
    A('.amdgcn_target "amdgcn-amd-amdhsa--gfx950"')
    A(".text"); A(f".globl {KNAME}"); A(".p2align 8"); A(f".type {KNAME},@function"); A.label(KNAME)
    A("s_cmp_ge_u32 s2, 256"); A("s_cbranch_scc1 L_end")
    if diag: A("s_memrealtime s[80:81]")
    A("s_load_dwordx16 s[4:19], s[0:1], 0")
    A("s_load_dwordx2 s[20:21], s[0:1], 64")
    A("v_lshrrev_b32 v1, 6, v0")
    A("v_and_b32 v0, 63, v0")
    A("v_readfirstlane_b32 s3, v1")
    A("s_lshr_b32 s22, s2, 1")
    A("s_and_b32 s23, s2, 1")
    A(f"s_cmp_eq_u32 s23, {treehalf}")
    A("s_cselect_b32 s24, 65, 64")
    A(f"s_mov_b32 s25, {SPIN}")
    A(f"v_mov_b32 v1, {CTL}")
    A("s_cmp_eq_u32 s3, 4"); A("s_cbranch_scc1 L_loader")

    vQ, vO, vSA, vSB, vK, vV, vP, vT = 32, 64, 128, 144, 160, 192, 224, 232
    vKb, vVb, vM, vL, vAcc0, vAcc1, vA0, vA1, vProgA, vTmp = 2, 3, 4, 5, 6, 7, 8, 9, 10, 11
    sC, sTHR, sL, sNeed, st, sKslot, sVslot = 's26', 's27', 's28', 's29', 's30', 's31', 's32'
    def vr(b, n=1): return f"v{b}" if n == 1 else f"v[{b}:{b+n-1}]"
    A("v_and_b32 v12, 31, v0")
    A("v_lshrrev_b32 v13, 5, v0")
    A("v_lshlrev_b32 v14, 8, v12")
    A("v_lshl_add_u32 v15, v13, 4, v14")
    A("s_lshl_b32 s33, s22, 2"); A("s_add_u32 s33, s33, s3"); A("s_lshl_b32 s33, s33, 13")
    A("s_waitcnt lgkmcnt(0)")
    A("s_mov_b32 s36, s4"); A("s_mov_b32 s37, s5"); A("s_mov_b32 s38, 0x400000"); A("s_mov_b32 s39, 0x20000")
    for j in range(8):
        A(f"buffer_load_dwordx4 {vr(vQ+4*j,4)}, v15, s[36:39], s33 offen offset:{32*j} {qflags}")
    A("s_mov_b32 s40, s14"); A("s_mov_b32 s41, s15"); A("s_mov_b32 s42, 0x8000"); A("s_mov_b32 s43, 0x20000")
    A("v_lshlrev_b32 v16, 6, v12"); A("v_lshl_add_u32 v16, v13, 3, v16")
    A("s_lshr_b32 s34, s22, 3"); A("s_lshl_b32 s34, s34, 11")
    for g in range(4):
        A(f"buffer_load_dwordx2 {vr(vT+2*g,2)}, v16, s[40:43], s34 offen offset:{16*g}")
    A("s_barrier")
    A("v_and_b32 v17, 3, v12"); A("v_lshlrev_b32 v17, 2, v17")
    A("v_bfe_u32 v18, v12, 2, 2"); A("v_or_b32 v17, v17, v18"); A("v_xor_b32 v17, v17, v13")
    A(f"v_lshl_add_u32 v{vKb}, v17, 4, v14")
    if KRING: A(f"v_add_u32 v{vKb}, {KRING}, v{vKb}")
    A("v_bfe_u32 v17, v0, 2, 2")
    A("v_lshl_add_u32 v18, v13, 2, v17")
    A("v_lshlrev_b32 v18, 8, v18")
    A("v_lshl_add_u32 v18, v17, 6, v18")
    A("v_bfe_u32 v17, v0, 4, 1"); A("v_lshl_add_u32 v18, v17, 5, v18")
    A("v_and_b32 v17, 3, v0"); A("v_lshl_add_u32 v18, v17, 3, v18")
    A(f"v_add_u32 v{vVb}, {VRING}, v18")
    A(f"s_lshl_b32 s34, s3, 2"); A(f"s_add_u32 s34, s34, {CTL+16}"); A(f"v_mov_b32 v{vProgA}, s34")
    A(f"s_mov_b32 {sC}, {hex(f2u(math.log2(math.e) / math.sqrt(128.0)))}")
    A(f"s_mov_b32 {sTHR}, {hex(f2u(thr))}")
    A(f"s_mov_b32 {sL}, 0")
    A(f"v_mov_b32 v{vM}, 0xff800000"); A(f"v_mov_b32 v{vL}, 0")
    for i in range(64): A(f"v_mov_b32 v{vO+i}, 0")
    A(f"s_mov_b32 s35, {hex(f2u(-1e9 * math.sqrt(128.0)))}")
    A(f"s_cmp_eq_u32 s23, {treehalf}")
    A("s_cselect_b32 s35, s35, 0")
    A("s_waitcnt vmcnt(0)")
    for g in range(4):
        for i in range(4):
            src = vT + 2*g + i//2
            if i % 2 == 0: A(f"v_lshlrev_b32 v{vSA+4*g+i}, 16, v{src}")
            else: A(f"v_and_b32 v{vSA+4*g+i}, 0xffff0000, v{src}")
    for i in range(16): A(f"v_fma_f32 v{vSA+i}, v{vSA+i}, -s35, s35")

    nlab = [0]
    def wait_L(need_expr_setup):
        n = nlab[0]; nlab[0] += 1
        return need_expr_setup + [
            f"s_cmp_ge_i32 {sL}, {sNeed}", f"s_cbranch_scc1 L_ok{n}",
            f"L_poll{n}:",
            f"ds_read_b32 v{vTmp}, v1", "s_sub_u32 s25, s25, 1", "s_cbranch_scc1 L_end", "s_waitcnt lgkmcnt(0)",
            f"v_readfirstlane_b32 {sL}, v{vTmp}", f"s_cmp_ge_i32 {sL}, {sNeed}", f"s_cbranch_scc0 L_poll{n}",
            f"L_ok{n}:"]
    def k_reads():
        out = []
        for j in range(8):
            a = vA0 if j % 2 == 0 else vA1
            if j == 0: out.append([f"v_add_u32 v{vA0}, {sKslot}, v{vKb}", f"ds_read_b128 {vr(vK,4)}, v{vA0}"])
            else:
                prev = vA1 if j % 2 == 0 else vA0
                out.append([f"v_xor_b32 v{a}, {32*(j ^ (j-1))}, v{prev}", f"ds_read_b128 {vr(vK+4*j,4)}, v{a}"])
        return out
    def adv(slot): return [f"s_add_u32 {slot}, {slot}, 8192", f"s_cmp_eq_u32 {slot}, {NS*8192}", f"s_cselect_b32 {slot}, 0, {slot}"]
    def v_reads():
        out = []
        for n in range(4):
            a = vA0 if n % 2 == 0 else vA1
            g = []
            if n == 0: g.append(f"v_add_u32 v{vA0}, {sVslot}, v{vVb}")
            else:
                prev = vA1 if n % 2 == 0 else vA0
                g.append(f"v_xor_b32 v{a}, {64*(n ^ (n-1))}, v{prev}")
            first = True
            for t in range(2):
                for u in range(2):
                    r = vV + (t*4 + n)*4 + 2*u
                    ins = f"ds_read_b64_tr_b16 {vr(r,2)}, v{a} offset:{t*4096+u*2048}"
                    if first: g.append(ins); out.append(g); first = False
                    else: out.append(ins)
        return out
    def qk(S, first_c):
        return [f"v_mfma_f32_32x32x16_bf16 {vr(S,16)}, {vr(vK+4*j,4)}, {vr(vQ+4*j,4)}, {first_c if j == 0 else vr(S,16)}" for j in range(8)]
    def pv():
        return [f"v_mfma_f32_32x32x16_bf16 {vr(vO+16*n,16)}, {vr(vV+(t*4+n)*4,4)}, {vr(vP+4*t,4)}, {vr(vO+16*n,16)}" for t in range(2) for n in range(4)]
    def softmax(S):
        def T(k, e): return vT + 2*(k % 4) + e
        F = lambda k: [f"v_fma_f32 v{T(k,e)}, v{S+2*k+e}, {sC}, -v{vM}" for e in range(2)]
        E = lambda k: [f"v_exp_f32 v{T(k,e)}, v{T(k,e)}" for e in range(2)]
        def AC(k):
            if k == 0: r = [f"v_add_f32 v{vAcc0}, v{T(k,0)}, v{T(k,1)}"]
            elif k == 1: r = [f"v_add_f32 v{vAcc1}, v{T(k,0)}, v{T(k,1)}"]
            else: r = [f"v_add_f32 v{vAcc0}, v{vAcc0}, v{T(k,0)}", f"v_add_f32 v{vAcc1}, v{vAcc1}, v{T(k,1)}"]
            return r + [f"v_cvt_pk_bf16_f32 v{vP+k}, v{T(k,0)}, v{T(k,1)}"]
        out = F(0) + F(1) + E(0)
        for k in range(8):
            if k + 2 < 8: out += F(k+2)
            if k + 1 < 8: out += E(k+1)
            else: out += ["s_nop 0"]
            out += AC(k)
        out += [f"v_add_f32 v{vAcc0}, v{vAcc0}, v{vAcc1}"]
        return out

    A(f"s_mov_b32 {sKslot}, 0"); A(f"s_mov_b32 {sVslot}, 0"); A(f"s_mov_b32 {st}, 0")
    for x in wait_L([f"s_mov_b32 {sNeed}, 1"]): A(x)
    for g in k_reads():
        for x in g: A(x)
    for x in adv(sKslot): A(x)
    A("s_waitcnt lgkmcnt(0)")
    for x in qk(vSA, vr(vSA,16)): A(x)
    for x in wait_L([f"s_mov_b32 {sNeed}, 2"]): A(x)
    for g in k_reads():
        for x in g: A(x)
    for x in adv(sKslot): A(x)
    A("s_nop 7")
    if diag: A("s_memrealtime s[82:83]")

    def body(X, Scur, Snext):
        A.label(f"L_body{X}")
        A("s_waitcnt lgkmcnt(0)")
        sm = softmax(Scur)
        npre = int(len(sm) * vpos)
        vw = wait_L([f"s_lshl_b32 {sNeed}, {st}, 1", f"s_add_u32 {sNeed}, {sNeed}, 3"])
        vrd = v_reads()
        rest = sm[npre:]
        merged = []
        i = 0
        for k, x in enumerate(vrd):
            merged.append(x)
            tgt = len(rest) * (k + 1) // (len(vrd) + 6)
            while i < tgt: merged.append(rest[i]); i += 1
        merged += rest[i:]
        fill = sm[:npre] + [vw] + merged
        for x in interleave(qk(Snext, "0"), fill): A(x)
        for x in adv(sVslot): A(x)
        A(f"v_cmp_nge_f32 vcc, {sTHR}, v{vAcc0}")
        A(f"s_cbranch_vccnz L_slow{X}")
        A.label(f"L_cont{X}")
        A(f"v_add_f32 v{vL}, v{vL}, v{vAcc0}")
        A(f"s_add_u32 {st}, {st}, 1")
        A(f"v_mov_b32 v{vTmp}, {st}")
        A("s_waitcnt lgkmcnt(0)")
        A(f"ds_write_b32 v{vProgA}, v{vTmp}")
        p = pv()
        A(p[0]); A(p[1])
        A(f"s_add_u32 {sNeed}, {st}, 1")
        A(f"s_cmp_ge_u32 {sNeed}, s24"); A(f"s_cbranch_scc1 L_nok{X}")
        for x in wait_L([f"s_lshl_b32 {sNeed}, {sNeed}, 1"]): A(x)
        for x in interleave(p[2:6], k_reads()): A(x)
        for x in adv(sKslot): A(x)
        A(p[6]); A(p[7])
        o = 'B' if X == 'A' else 'A'
        if X == 'B': A("s_branch L_bodyA")
        else: A("s_branch L_bodyB")
        A.label(f"L_nok{X}")
        for x in p[2:]: A(x)
        A(f"s_cmp_lt_u32 {st}, s24")
        A(f"s_cbranch_scc1 L_body{o}")
        A("s_branch L_fin")
    def slow(X, S):
        A.label(f"L_slow{X}")
        t0, t1 = vT, vT + 1
        A(f"v_max3_f32 v{t0}, v{S}, v{S+1}, v{S+2}")
        for i in range(3, 15, 2): A(f"v_max3_f32 v{t0}, v{t0}, v{S+i}, v{S+i+1}")
        A(f"v_max_f32 v{t0}, v{t0}, v{S+15}")
        A(f"v_mov_b32 v{t1}, v{t0}"); A("s_nop 1")
        A(f"v_permlane32_swap_b32 v{t0}, v{t1}"); A("s_nop 1")
        A(f"v_max_f32 v{t0}, v{t0}, v{t1}")
        A(f"v_mul_f32 v{t0}, {sC}, v{t0}")
        A(f"v_max_f32 v{t0}, v{t0}, v{vM}")
        A(f"v_sub_f32 v{t1}, v{vM}, v{t0}")
        A(f"v_exp_f32 v{t1}, v{t1}")
        A(f"v_mov_b32 v{vM}, v{t0}")
        A(f"v_mul_f32 v{vL}, v{vL}, v{t1}")
        for i in range(64): A(f"v_mul_f32 v{vO+i}, v{vO+i}, v{t1}")
        for x in softmax(S): A(x)
        A(f"s_branch L_cont{X}")
    body('A', vSA, vSB)
    body('B', vSB, vSA)
    slow('A', vSA)
    slow('B', vSB)

    A.label("L_fin")
    if diag: A("s_memrealtime s[84:85]")
    A(f"v_mov_b32 v{vT}, v{vL}"); A("s_nop 1")
    A(f"v_permlane32_swap_b32 v{vT}, v{vL}"); A("s_nop 1")
    A(f"v_add_f32 v{vL}, v{vL}, v{vT}")
    A("s_mov_b32 s44, s20"); A("s_mov_b32 s45, s21"); A("s_mov_b32 s46, 0x4000000"); A("s_mov_b32 s47, 0x20000")
    A("v_lshlrev_b32 v12, 4, v0")
    A("v_lshlrev_b32 v13, 3, v0")
    A.label("L_role")
    A(f"ds_read_b32 v{vTmp}, v1 offset:4"); A("s_sub_u32 s25, s25, 1"); A("s_cbranch_scc1 L_end"); A("s_waitcnt lgkmcnt(0)")
    A(f"v_readfirstlane_b32 s34, v{vTmp}"); A("s_cmp_eq_u32 s34, 2"); A("s_cbranch_scc1 L_role")
    A("s_cmp_eq_u32 s34, 1"); A("s_cbranch_scc1 L_recv")
    A("s_lshl_b32 s34, s2, 2"); A("s_add_u32 s34, s34, s3"); A(f"s_mul_i32 s35, s34, {OB_WAVE}"); A(f"s_add_u32 s35, s35, {OUTBOX}")
    for i in range(16):
        if i % 4 == 0 and i: A(f"s_add_u32 s35, s35, 4096")
        A(f"buffer_store_dwordx4 {vr(vO+4*i,4)}, v12, s[44:47], s35 offen offset:{(i%4)*1024} sc1")
    A(f"s_add_u32 s35, s35, 4096")
    A(f"buffer_store_dwordx2 {vr(vM,2)}, v13, s[44:47], s35 offen sc1")
    A("s_lshl_b32 s35, s2, 7"); A("s_lshl_b32 s34, s3, 2"); A("s_add_u32 s35, s35, s34"); A(f"s_add_u32 s35, s35, {FLAGS}")
    A("v_mov_b32 v14, 1"); A("v_mov_b32 v15, 0")
    A("s_waitcnt vmcnt(0)")
    A("s_mov_b64 exec, 1")
    A("buffer_store_dword v14, v15, s[44:47], s35 offen sc1")
    A("s_mov_b64 exec, -1")
    A("s_branch L_done")
    A.label("L_recv")
    A("s_xor_b32 s48, s2, 1")
    A("s_lshl_b32 s35, s48, 7"); A("s_lshl_b32 s34, s3, 2"); A("s_add_u32 s35, s35, s34"); A(f"s_add_u32 s35, s35, {FLAGS}")
    A("v_mov_b32 v15, 0")
    A.label("L_fpoll")
    A("buffer_load_dword v14, v15, s[44:47], s35 offen sc1")
    A("s_sub_u32 s25, s25, 16"); A("s_cbranch_scc1 L_end")
    A("s_waitcnt vmcnt(0)")
    A("v_readfirstlane_b32 s34, v14"); A("s_cmp_eq_u32 s34, 1"); A("s_cbranch_scc0 L_fpoll")
    A("s_lshl_b32 s34, s48, 2"); A("s_add_u32 s34, s34, s3"); A(f"s_mul_i32 s35, s34, {OB_WAVE}"); A(f"s_add_u32 s35, s35, {OUTBOX}")
    A(f"s_add_u32 s34, s35, 16384")
    A(f"buffer_load_dwordx2 v[16:17], v13, s[44:47], s34 offen sc1")
    for i in range(16):
        if i % 4 == 0 and i: A(f"s_add_u32 s35, s35, 4096")
        A(f"buffer_load_dwordx4 {vr(vK+4*i,4)}, v12, s[44:47], s35 offen offset:{(i%4)*1024} sc1")
    A("v_and_b32 v18, 31, v0"); A("v_lshrrev_b32 v19, 5, v0")
    A("v_and_b32 v20, 15, v18")
    A("v_lshlrev_b32 v20, 4, v20")
    A("v_lshl_add_u32 v20, v18, 8, v20")
    A("v_lshl_add_u32 v20, v19, 3, v20")
    A("s_lshl_b32 s34, s3, 13"); A(f"s_add_u32 s34, s34, {STAGE}")
    A("v_add_u32 v20, s34, v20")
    A("v_lshrrev_b32 v21, 4, v0")
    A("v_and_b32 v22, 15, v0")
    A("v_xor_b32 v22, v22, v21")
    A("v_lshlrev_b32 v22, 4, v22")
    A("v_lshl_add_u32 v22, v21, 8, v22")
    A("v_add_u32 v22, s34, v22")
    A("s_waitcnt vmcnt(16)")
    A(f"v_max_f32 v18, v{vM}, v16")
    A(f"v_sub_f32 v19, v{vM}, v18"); A("v_sub_f32 v21, v16, v18")
    A("v_exp_f32 v19, v19"); A("v_exp_f32 v21, v21"); A("s_nop 0")
    A(f"v_mul_f32 v18, v{vL}, v19"); A("v_fma_f32 v18, v17, v21, v18")
    A("v_rcp_f32 v18, v18"); A("s_nop 0")
    A("v_mul_f32 v19, v19, v18"); A("v_mul_f32 v21, v21, v18")
    for i in range(64): A(f"v_mul_f32 v{vO+i}, v{vO+i}, v19")
    for q in range(16):
        A(f"s_waitcnt vmcnt({15-q})")
        for e in range(4): A(f"v_fma_f32 v{vO+4*q+e}, v{vK+4*q+e}, v21, v{vO+4*q+e}")
        A(f"v_cvt_pk_bf16_f32 v{vT+2*(q%4)}, v{vO+4*q}, v{vO+4*q+1}")
        A(f"v_cvt_pk_bf16_f32 v{vT+2*(q%4)+1}, v{vO+4*q+2}, v{vO+4*q+3}")
        A(f"v_xor_b32 v23, {16*q}, v20")
        A(f"ds_write_b64 v23, {vr(vT+2*(q%4),2)}")
    A("s_mov_b32 s40, s16"); A("s_mov_b32 s41, s17"); A("s_mov_b32 s42, 0x400000"); A("s_mov_b32 s43, 0x20000")
    A("s_waitcnt lgkmcnt(0)")
    for k in range(8):
        A(f"v_xor_b32 v23, {((4*k)&15)*16}, v22")
        A(f"ds_read_b128 {vr(vK+4*k,4)}, v23 offset:{k*1024}")
    for k in range(8):
        if k == 4: A("s_add_u32 s33, s33, 4096")
        A(f"s_waitcnt lgkmcnt({7-k})")
        A(f"buffer_store_dwordx4 {vr(vK+4*k,4)}, v12, s[40:43], s33 offen offset:{(k%4)*1024} {stflags}")
    A.label("L_done")
    if diag:
        A("s_waitcnt vmcnt(0)")
        A("s_memrealtime s[86:87]")
        A("s_cmp_lg_u32 s3, 0"); A("s_cbranch_scc1 L_end")
        A("s_waitcnt lgkmcnt(0)")
        for i in range(8): A(f"v_mov_b32 v{16+i}, s{80+i}")
        A("s_lshl_b32 s34, s2, 6"); A("v_mov_b32 v15, 0")
        A("s_mov_b64 exec, 1")
        A("buffer_store_dwordx4 v[16:19], v15, s[44:47], s34 offen")
        A("buffer_store_dwordx4 v[20:23], v15, s[44:47], s34 offen offset:16")
    A("s_endpgm")

    A.label("L_loader")
    A("s_setprio 3")
    D = (W - 2) // 8
    qstar = (W - 2) % 8
    A("v_lshrrev_b32 v2, 4, v0"); A("v_and_b32 v3, 15, v0")
    A("v_lshlrev_b32 v4, 2, v2"); A("v_xor_b32 v3, v3, v4"); A("v_lshlrev_b32 v3, 4, v3")
    A("v_lshl_add_u32 v4, v2, 8, v3")
    for k in range(1, 4): A(f"v_xor_b32 v{4+k}, {16*k}, v4")
    A("v_cmp_eq_u32 vcc, 1, v0"); A("v_mov_b32 v9, 0"); A("v_cndmask_b32 v8, 0, 2, vcc" if False else "v_mov_b32 v8, 2")
    A("v_cndmask_b32 v8, v9, v8, vcc")
    A("v_lshl_add_u32 v10, v0, 2, v1")
    A("s_mov_b64 exec, 0xff")
    A("ds_write_b32 v10, v8")
    A("s_mov_b64 exec, -1")
    A(f"v_and_b32 v11, 3, v0"); A("v_lshlrev_b32 v11, 2, v11"); A(f"v_add_u32 v11, {CTL+16}, v11")
    A("s_lshl_b32 s26, s2, 19")
    A("s_lshl_b32 s27, s22, 13")
    A("s_waitcnt lgkmcnt(0)")
    A("s_mov_b32 s36, s6"); A("s_mov_b32 s37, s7"); A("s_mov_b32 s38, 0x8000000"); A("s_mov_b32 s39, 0x20000")
    A("s_mov_b32 s40, s8"); A("s_mov_b32 s41, s9"); A("s_mov_b32 s42, 0x8000000"); A("s_mov_b32 s43, 0x20000")
    A(f"s_cmp_eq_u32 s23, {treehalf}")
    A("s_cselect_b32 s44, s10, s6"); A("s_cselect_b32 s45, s11, s7"); A("s_cselect_b32 s46, 0x100000, s38"); A("s_mov_b32 s47, 0x20000")
    A("s_cselect_b32 s48, s12, s8"); A("s_cselect_b32 s49, s13, s9"); A("s_cselect_b32 s50, 0x100000, s38"); A("s_mov_b32 s51, 0x20000")
    A("s_cselect_b32 s27, s27, s26")
    A("s_cselect_b32 s28, 0, 8192")
    A("s_add_u32 s26, s26, s28")
    A("s_mov_b32 s29, s26")
    A(f"s_mov_b32 s30, {KRING}")
    A(f"s_mov_b32 s31, {VRING}")
    A(f"s_mov_b32 s32, {-D}")
    A("s_mov_b32 s33, 0")
    def step(srd, soff, slot, isK, waits=True):
        for q in range(8):
            if q == 0: A(f"s_mov_b32 m0, {slot}"); A(f"s_add_u32 s34, {soff}, 4096")
            if q == 4: A(f"s_add_u32 m0, {slot}, 4096"); A("s_nop 0")
            v = 4 + (q & 3) if isK else 4
            A(f"buffer_load_dwordx4 v{v}, {srd}, {soff if q < 4 else 's34'} offen offset:{(q&3)*1024} {ldflags if (isK or vflags is None) else vflags} lds")
            A(f"s_waitcnt vmcnt({W-1})")
            if q == qstar:
                A("v_mov_b32 v8, s32"); A("s_add_u32 s32, s32, 1"); A("ds_write_b32 v1, v8")
        base, end = (KRING, KRING + NS*8192) if isK else (VRING, VRING + NS*8192)
        A(f"s_add_u32 {slot}, {slot}, 8192"); A(f"s_cmp_eq_u32 {slot}, {end}"); A(f"s_cselect_b32 {slot}, {base}, {slot}")
    step("s[44:47]", "s27", "s30", True)
    A("s_waitcnt lgkmcnt(0)")
    A("s_barrier")
    A("s_mov_b32 s52, s20"); A("s_mov_b32 s53, s21"); A("s_mov_b32 s54, 0x4000000"); A("s_mov_b32 s55, 0x20000")
    A("s_lshl_b32 s35, s2, 7"); A(f"s_add_u32 s35, s35, {FLAGS}")
    A("v_lshlrev_b32 v12, 2, v0")
    A("s_mov_b64 exec, 0xf")
    A("buffer_store_dword v9, v12, s[52:55], s35 offen sc1")
    A("s_mov_b64 exec, -1")
    step("s[36:39]", "s26", "s30", True); A("s_add_u32 s26, s26, 8192")
    step("s[48:51]", "s27", "s31", False)
    A("s_mov_b32 s56, 1")
    A.label("L_lloop")
    A(f"s_sub_u32 s57, s56, {NS-1}")
    A("s_cmp_ge_i32 s33, s57"); A("s_cbranch_scc1 L_space")
    A("v_mov_b32 v13, s57")
    A.label("L_spoll")
    A("ds_read_b32 v12, v11"); A("s_sub_u32 s25, s25, 1"); A("s_cbranch_scc1 L_end"); A("s_waitcnt lgkmcnt(0)")
    A("v_cmp_lt_i32 vcc, v12, v13"); A("s_cbranch_vccnz L_spoll")
    A("v_readlane_b32 s33, v12, 0"); A("v_readlane_b32 s58, v12, 1"); A("v_readlane_b32 s59, v12, 2"); A("v_readlane_b32 s60, v12, 3")
    A("s_min_i32 s33, s33, s58"); A("s_min_i32 s59, s59, s60"); A("s_min_i32 s33, s33, s59")
    A.label("L_space")
    A("s_add_u32 s56, s56, 1")
    A("s_cmp_ge_u32 s56, s24"); A("s_cbranch_scc1 L_lastv")
    step("s[36:39]", "s26", "s30", True); A("s_add_u32 s26, s26, 8192")
    step("s[40:43]", "s29", "s31", False); A("s_add_u32 s29, s29, 8192")
    A("s_branch L_lloop")
    A.label("L_lastv")
    step("s[40:43]", "s29", "s31", False)
    if diag: A("s_memrealtime s[82:83]")
    A("s_lshr_b32 s34, s22, 1"); A("s_lshl_b32 s34, s34, 2"); A("v_mov_b32 v12, s34")
    A("s_and_b32 s35, s22, 1"); A("s_lshl_b32 s35, s35, 4"); A("s_lshl_b32 s57, 1, s35"); A("v_mov_b32 v13, s57")
    A("s_mov_b64 exec, 1")
    A("global_atomic_add v14, v12, v13, s[18:19] sc0 sc1")
    A("s_mov_b64 exec, -1")
    for r in range(D, 0, -1):
        A(f"s_waitcnt vmcnt({8*r+1})")
        A("v_mov_b32 v8, s32"); A("s_add_u32 s32, s32, 1"); A("ds_write_b32 v1, v8")
    A("s_waitcnt vmcnt(1)")
    A("v_mov_b32 v8, 0x7fff"); A("ds_write_b32 v1, v8")
    if diag: A("s_memrealtime s[84:85]")
    A("s_waitcnt vmcnt(0)")
    A("v_readfirstlane_b32 s34, v14"); A("s_lshr_b32 s34, s34, s35"); A("s_and_b32 s34, s34, 1")
    A("v_mov_b32 v8, s34"); A("ds_write_b32 v1, v8 offset:4")
    A("s_waitcnt lgkmcnt(0)")
    if diag:
        A("s_memrealtime s[86:87]")
        A("s_getreg_b32 s80, hwreg(HW_REG_XCC_ID)"); A("s_mov_b32 s81, s34")
        A("s_waitcnt lgkmcnt(0)")
        for i in range(8): A(f"v_mov_b32 v{16+i}, s{80+i}")
        A("s_lshl_b32 s34, s2, 6"); A("v_mov_b32 v15, 0")
        A("s_mov_b64 exec, 1")
        A("buffer_store_dwordx4 v[16:19], v15, s[52:55], s34 offen offset:32")
        A("buffer_store_dwordx4 v[20:23], v15, s[52:55], s34 offen offset:48")
    A.label("L_end")
    A("s_endpgm")
    A('.section .rodata,"a"'); A(".p2align 6")
    A(f".amdhsa_kernel {KNAME}")
    A(".amdhsa_next_free_vgpr 248"); A(".amdhsa_next_free_sgpr 96"); A(".amdhsa_accum_offset 248")
    A(".amdhsa_group_segment_fixed_size 0"); A(".amdhsa_kernarg_size 72"); A(".amdhsa_user_sgpr_count 2")
    A(".amdhsa_user_sgpr_kernarg_segment_ptr 1"); A(".amdhsa_system_sgpr_workgroup_id_x 1")
    A(".end_amdhsa_kernel")
    return A.text()

if __name__ == '__main__':
    kw = eval("dict(%s)" % (sys.argv[2] if len(sys.argv) > 2 else ""))
    open(sys.argv[1], 'w').write(gen(**kw))
```

```python
import sys, math, struct
KNAME = "standalone__tree_speculative_verify_tree_attention_over_candidate_token_tree__sampling_kernel"
def f2u(x): return struct.unpack('<I', struct.pack('<f', x))[0]

class Asm:
    def __init__(self): self.L = []
    def __call__(self, s):
        if isinstance(s, list):
            for x in s: self(x)
        else: self.L.append(s)
    def label(self, s): self.L.append(s + ":")
    def text(self): return "\n".join(("    " + l if not l.endswith(":") and not l.startswith(";") and not l.startswith(".") else l) for l in self.L) + "\n"

def cost(x):
    if isinstance(x, list): return sum(cost(y) for y in x)
    if x.endswith(':'): return 0
    return 2 if x.startswith('v_exp') else 1

def interleave(mf, fill, pre=0.0):
    out = []
    tot = sum(cost(f) for f in fill)
    n = len(mf); idx = 0; acc = 0
    for i, m in enumerate(mf):
        out.append(m)
        tgt = tot * (i + 1) / n
        while idx < len(fill) and acc + cost(fill[idx]) / 2.0 <= tgt:
            out.append(fill[idx]); acc += cost(fill[idx]); idx += 1
    out += fill[idx:]
    return out

def merge(a, b, ra=1, rb=1):
    out = []; i = j = 0
    while i < len(a) or j < len(b):
        for _ in range(ra):
            if i < len(a): out.append(a[i]); i += 1
        for _ in range(rb):
            if j < len(b): out.append(b[j]); j += 1
    return out

def gen(W=24, ldflags='nt', vflags=None, qflags='', stflags='', diag=0, thr=1024.0, treehalf=0, nomem=0,
        lsleep=1, csleep=1, fsleep=4, drop='', budA=(4,4,4,4,5,5,9), budB=(4,5,6,6,6,6,3), vper=(3,3,3,3,2,2,0)):
    A = Asm()
    NS = 8
    VRING = NS * 8192
    MLB = 2 * NS * 8192
    CTL = MLB + 2048
    LDS = CTL + 64
    OUTBOX = 1 << 20
    OB_WG = 4 * 16384 + 2048
    FLAGS = 32 << 20
    SPIN = 1 << 22
    def vr(b, n=1): return f"v{b}" if n == 1 else f"v[{b}:{b+n-1}]"
    A(f"; @launch grid=(256,1,1) block=(320,1,1) lds={LDS}")
    A('.amdgcn_target "amdgcn-amd-amdhsa--gfx950"')
    A(".text"); A(f".globl {KNAME}"); A(".p2align 8"); A(f".type {KNAME},@function"); A.label(KNAME)
    A("s_cmp_ge_u32 s2, 256"); A("s_cbranch_scc1 L_end0")
    if diag: A("s_memrealtime s[80:81]")
    A("s_load_dwordx16 s[4:19], s[0:1], 0")
    A("s_load_dwordx2 s[20:21], s[0:1], 64")
    A("v_lshrrev_b32 v1, 6, v0")
    A("v_and_b32 v0, 63, v0")
    A("v_readfirstlane_b32 s3, v1")
    A("s_lshr_b32 s22, s2, 1")
    A("s_and_b32 s23, s2, 1")
    A(f"s_cmp_eq_u32 s23, {treehalf}")
    A("s_cselect_b32 s24, 65, 64")
    A(f"s_mov_b32 s25, {SPIN}")
    A(f"v_mov_b32 v1, {CTL}")
    A("s_cmp_lg_u32 s3, 0"); A("s_cbranch_scc1 L_consumer")

    A("s_setprio 3")
    D = (W - 2) // 8
    qstar = (W - 2) % 8
    A("v_lshrrev_b32 v2, 4, v0"); A("v_and_b32 v3, 15, v0")
    A("v_lshlrev_b32 v4, 2, v2"); A("v_xor_b32 v3, v3, v4"); A("v_lshlrev_b32 v3, 4, v3")
    A("v_lshl_add_u32 v4, v2, 8, v3")
    for k in range(1, 4): A(f"v_xor_b32 v{4+k}, {16*k}, v4")
    A("v_mov_b32 v9, 0")
    A("v_lshl_add_u32 v10, v0, 2, v1")
    A("s_mov_b64 exec, 0xffff")
    A("ds_write_b32 v10, v9")
    A("s_mov_b64 exec, -1")
    A("s_lshl_b32 s26, s2, 19")
    A("s_lshl_b32 s27, s22, 13")
    A("s_mov_b32 s38, 0x8000000"); A("s_mov_b32 s39, 0x20000")
    A("s_mov_b32 s42, 0x8000000"); A("s_mov_b32 s43, 0x20000")
    A("s_mov_b32 s47, 0x20000"); A("s_mov_b32 s51, 0x20000")
    A(f"s_cmp_eq_u32 s23, {treehalf}")
    A("s_cselect_b32 s46, 0x100000, s38"); A("s_cselect_b32 s50, 0x100000, s38")
    A("s_cselect_b32 s27, s27, s26")
    A("s_cselect_b32 s28, 0, 8192")
    A("s_mov_b32 s30, 0")
    A(f"s_mov_b32 s31, {VRING}")
    A(f"s_mov_b32 s32, {-D}")
    A("s_waitcnt lgkmcnt(0)")
    A("s_cselect_b32 s44, s10, s6"); A("s_cselect_b32 s45, s11, s7")
    A("s_cselect_b32 s48, s12, s8"); A("s_cselect_b32 s49, s13, s9")
    A("s_mov_b32 s36, s6"); A("s_mov_b32 s37, s7")
    A("s_mov_b32 s40, s8"); A("s_mov_b32 s41, s9")
    issued = [0]
    def step(srd, soff, slot, isK, startup=False):
        for q in range(8):
            if q == 0: A(f"s_mov_b32 m0, {slot}"); A(f"s_add_u32 s34, {soff}, 4096")
            if q == 4: A(f"s_add_u32 m0, {slot}, 4096"); A("s_nop 0")
            v = 4 + (q & 3) if isK else 4
            fl = ldflags if (isK or vflags is None) else vflags
            A(f"buffer_load_dwordx4 v{v}, {srd}, {soff if q < 4 else 's34'} offen offset:{(q&3)*1024} {fl} lds")
            issued[0] += 1
            if not (startup and issued[0] < W): A(f"s_waitcnt vmcnt({W-1})")
            if q == qstar:
                if startup and issued[0] < W: A("s_add_u32 s32, s32, 1")
                else: A("v_mov_b32 v8, s32"); A("s_add_u32 s32, s32, 1"); A("ds_write_b32 v1, v8")
        A(f"s_add_u32 {slot}, {slot}, 8192")
        if isK: A(f"s_and_b32 {slot}, {slot}, 0xffff")
        else: A(f"s_and_b32 {slot}, {slot}, 0xffff"); A(f"s_bitset1_b32 {slot}, 16")
    step("s[44:47]", "s27", "s30", True, True)
    A("s_add_u32 s26, s26, s28")
    A("s_mov_b32 s29, s26")
    step("s[36:39]", "s26", "s30", True, True); A("s_add_u32 s26, s26, 8192")
    A("s_barrier")
    step("s[48:51]", "s27", "s31", False, True)
    A("s_mov_b32 s52, s20"); A("s_mov_b32 s53, s21"); A("s_mov_b32 s54, 0x4000000"); A("s_mov_b32 s55, 0x20000")
    A("s_lshl_b32 s35, s2, 7"); A(f"s_add_u32 s35, s35, {FLAGS}")
    A("v_and_b32 v11, 3, v0"); A("v_lshlrev_b32 v12, 2, v11"); A(f"v_add_u32 v11, {CTL+16}, v12")
    A("s_mov_b64 exec, 0xf")
    A("buffer_store_dword v9, v12, s[52:55], s35 offen sc1")
    A("s_mov_b64 exec, -1")
    A("s_mov_b32 s33, 0")
    A("s_mov_b32 s56, 1")
    def space(tag):
        A("s_cmp_ge_i32 s33, s57"); A(f"s_cbranch_scc1 L_space{tag}")
        A("v_mov_b32 v13, s57")
        A.label(f"L_spoll{tag}")
        A("ds_read_b32 v14, v11"); A("s_sub_u32 s25, s25, 1"); A("s_cbranch_scc1 L_end0"); A("s_waitcnt lgkmcnt(0)")
        A("v_cmp_lt_i32 vcc, v14, v13"); A(f"s_cbranch_vccz L_sok{tag}")
        if lsleep: A(f"s_sleep {lsleep}")
        A(f"s_branch L_spoll{tag}")
        A.label(f"L_sok{tag}")
        A("v_readlane_b32 s33, v14, 0"); A("v_readlane_b32 s58, v14, 1"); A("v_readlane_b32 s59, v14, 2"); A("v_readlane_b32 s60, v14, 3")
        A("s_min_i32 s33, s33, s58"); A("s_min_i32 s59, s59, s60"); A("s_min_i32 s33, s33, s59")
        A.label(f"L_space{tag}")
    A.label("L_lloop")
    A(f"s_sub_u32 s57, s56, {NS-1}")
    space("a")
    A("s_add_u32 s56, s56, 1")
    if nomem: A(f"s_cmp_ge_u32 s56, {NS}")
    else: A("s_cmp_ge_u32 s56, s24")
    A("s_cbranch_scc1 L_lastv")
    step("s[36:39]", "s26", "s30", True); A("s_add_u32 s26, s26, 8192")
    step("s[40:43]", "s29", "s31", False); A("s_add_u32 s29, s29, 8192")
    A("s_branch L_lloop")
    A.label("L_lastv")
    step("s[40:43]", "s29", "s31", False)
    if diag: A("s_memrealtime s[82:83]")
    A("s_lshr_b32 s34, s22, 1"); A("s_lshl_b32 s34, s34, 2"); A("v_mov_b32 v15, s34")
    A("s_and_b32 s35, s22, 1"); A("s_lshl_b32 s35, s35, 4"); A("s_lshl_b32 s57, 1, s35"); A("v_mov_b32 v13, s57")
    A("s_mov_b64 exec, 1")
    A("global_atomic_add v16, v15, v13, s[18:19] sc0 sc1")
    A("s_mov_b64 exec, -1")
    assert D >= 1
    if nomem: A("s_lshl_b32 s32, s24, 1"); A(f"s_sub_u32 s32, s32, {D}"); A("s_waitcnt vmcnt(1)")
    for r in range(D, 0, -1):
        A(f"s_waitcnt vmcnt({8*r+1})")
        if r == 1: A("s_add_u32 s32, s32, 1")
        A("v_mov_b32 v8, s32"); A("s_add_u32 s32, s32, 1"); A("ds_write_b32 v1, v8")
    A("s_add_u32 s32, s32, 1")
    A("s_waitcnt vmcnt(1)")
    A("v_mov_b32 v8, s32"); A("ds_write_b32 v1, v8")
    if diag: A("s_memrealtime s[84:85]")
    A("s_waitcnt vmcnt(0)")
    A("v_readfirstlane_b32 s61, v16"); A("s_lshr_b32 s61, s61, s35"); A("s_and_b32 s61, s61, 1")
    A("s_cbranch_scc1 L_lrecv")
    A("v_mov_b32 v8, 1"); A("ds_write_b32 v1, v8 offset:4")
    A("s_branch L_ldone")
    A.label("L_lrecv")
    A("s_xor_b32 s48, s2, 1")
    A("s_lshl_b32 s35, s48, 7"); A(f"s_add_u32 s35, s35, {FLAGS}")
    A.label("L_fpoll")
    A("buffer_load_dword v14, v12, s[52:55], s35 offen sc1")
    A("s_sub_u32 s25, s25, 64"); A("s_cbranch_scc1 L_end0")
    A("s_waitcnt vmcnt(0)")
    A("v_cmp_ne_u32 vcc, 1, v14"); A("s_cbranch_vccz L_fok")
    if fsleep: A(f"s_sleep {fsleep}")
    A("s_branch L_fpoll")
    A.label("L_fok")
    A("s_sub_u32 s57, s24, 4")
    if nomem: A("s_mov_b32 s57, s24")
    space("b")
    A("v_lshlrev_b32 v3, 4, v0")
    A(f"s_mul_i32 s35, s48, {OB_WG}"); A(f"s_add_u32 s35, s35, {OUTBOX}")
    A(f"s_mov_b32 m0, {MLB}"); A("s_add_u32 s34, s35, 65536")
    for q in range(2): A(f"buffer_load_dwordx4 v3, s[52:55], s34 offen offset:{q*1024} sc1 lds")
    A("s_and_b32 s30, s24, 7"); A("s_lshl_b32 s30, s30, 13")
    def pub(k): A(f"v_mov_b32 v8, {2+k}"); A("ds_write_b32 v1, v8 offset:4")
    for r in range(4):
        for hh in range(4):
            A(f"s_add_u32 m0, s30, {(hh & 1)*4096 + (VRING if hh >= 2 else 0)}")
            A("s_nop 0")
            for q in range(4): A(f"buffer_load_dwordx4 v3, s[52:55], s35 offen offset:{q*1024} sc1 lds")
            A("s_add_u32 s35, s35, 4096")
        A("s_add_u32 s30, s30, 8192"); A("s_and_b32 s30, s30, 0xffff")
        if r == 2: A("s_waitcnt vmcnt(32)"); pub(1)
    A("s_waitcnt vmcnt(32)"); pub(2)
    A("s_waitcnt vmcnt(16)"); pub(3)
    A("s_waitcnt vmcnt(0)"); pub(4)
    A.label("L_ldone")
    A("s_waitcnt lgkmcnt(0)")
    if diag:
        A("s_memrealtime s[86:87]")
        A("s_getreg_b32 s80, hwreg(HW_REG_XCC_ID)"); A("s_mov_b32 s81, s61")
        A("s_waitcnt lgkmcnt(0)")
        for i in range(8): A(f"v_mov_b32 v{16+i}, s{80+i}")
        A("s_lshl_b32 s34, s2, 6"); A("v_mov_b32 v15, 0")
        A("s_mov_b64 exec, 1")
        A("buffer_store_dwordx4 v[16:19], v15, s[52:55], s34 offen offset:32")
        A("buffer_store_dwordx4 v[20:23], v15, s[52:55], s34 offen offset:48")
    A.label("L_end0")
    A("s_endpgm")

    A.label("L_consumer")
    vQ, vO, vSA, vSB, vK, vV, vT = 32, 64, 128, 144, 160, 192, 240
    vP = {'A': 224, 'B': 232}
    vM, vL, vAcc0, vAcc1, vProgA, vProg, vTmp = 4, 5, 6, 7, 8, 9, 10
    vKa, vVa = 12, 20
    sC, sTHR, sL, sNV, sNK, sKcap, sEnd = 's26', 's27', 's28', 's29', 's30', 's31', 's32'
    A("s_sub_u32 s3, s3, 1")
    A("v_and_b32 v24, 31, v0")
    A("v_lshrrev_b32 v25, 5, v0")
    A("v_lshlrev_b32 v26, 8, v24")
    A("v_lshl_add_u32 v27, v25, 4, v26")
    A("s_lshl_b32 s33, s22, 2"); A("s_add_u32 s33, s33, s3"); A("s_lshl_b32 s33, s33, 13")
    A("s_mov_b32 s38, 0x400000"); A("s_mov_b32 s39, 0x20000")
    A("s_mov_b32 s42, 0x8000"); A("s_mov_b32 s43, 0x20000")
    A("v_lshlrev_b32 v28, 6, v24"); A("v_lshl_add_u32 v28, v25, 3, v28")
    A("s_lshr_b32 s34, s22, 3"); A("s_lshl_b32 s34, s34, 11")
    A("s_waitcnt lgkmcnt(0)")
    A("s_mov_b32 s36, s4"); A("s_mov_b32 s37, s5")
    for j in range(8):
        A(f"buffer_load_dwordx4 {vr(vQ+4*j,4)}, v27, s[36:39], s33 offen offset:{32*j} {qflags}")
    A("s_mov_b32 s40, s14"); A("s_mov_b32 s41, s15")
    for g in range(4):
        A(f"buffer_load_dwordx2 {vr(vT+2*g,2)}, v28, s[40:43], s34 offen offset:{16*g}")
    A("s_barrier")
    A("v_and_b32 v29, 3, v24"); A("v_lshlrev_b32 v29, 2, v29")
    A("v_bfe_u32 v30, v24, 2, 2"); A("v_or_b32 v29, v29, v30"); A("v_xor_b32 v29, v29, v25")
    A(f"v_lshl_add_u32 v{vKa}, v29, 4, v26")
    for j in range(1, 8): A(f"v_xor_b32 v{vKa+j}, {32*j}, v{vKa}")
    A("v_bfe_u32 v29, v0, 2, 2")
    A("v_lshl_add_u32 v30, v25, 2, v29")
    A("v_lshlrev_b32 v30, 8, v30")
    A("v_lshl_add_u32 v30, v29, 6, v30")
    A("v_bfe_u32 v29, v0, 4, 1"); A("v_lshl_add_u32 v30, v29, 5, v30")
    A("v_and_b32 v29, 3, v0"); A("v_lshl_add_u32 v30, v29, 3, v30")
    A(f"v_add_u32 v{vVa}, {VRING}, v30")
    for n in range(1, 4): A(f"v_xor_b32 v{vVa+n}, {64*n}, v{vVa}")
    A(f"s_lshl_b32 s34, s3, 2"); A(f"s_add_u32 s34, s34, {CTL+16}"); A(f"v_mov_b32 v{vProgA}, s34")
    A(f"v_mov_b32 v{vProg}, 0")
    A(f"s_mov_b32 {sC}, {hex(f2u(math.log2(math.e) / math.sqrt(128.0)))}")
    A(f"s_mov_b32 {sTHR}, {hex(f2u(thr))}")
    A(f"s_mov_b32 {sL}, 0")
    A(f"v_mov_b32 v{vM}, 0xff800000"); A(f"v_mov_b32 v{vL}, 0")
    A(f"v_mov_b32 v{vAcc0}, 0x7f800000"); A(f"v_mov_b32 v{vAcc1}, 0")
    for i in range(64): A(f"v_mov_b32 v{vO+i}, 0")
    A(f"s_mov_b32 s35, {hex(f2u(-1e9 * math.sqrt(128.0)))}")
    A(f"s_cmp_eq_u32 s23, {treehalf}")
    A("s_cselect_b32 s35, s35, 0")
    A(f"s_lshl_b32 {sEnd}, s24, 1"); A(f"s_add_u32 {sEnd}, {sEnd}, 4")
    A("s_waitcnt vmcnt(0)")
    for g in range(4):
        for i in range(4):
            src = vT + 2*g + i//2
            if i % 2 == 0: A(f"v_lshlrev_b32 v{vSA+4*g+i}, 16, v{src}")
            else: A(f"v_and_b32 v{vSA+4*g+i}, 0xffff0000, v{src}")
    for i in range(16): A(f"v_fma_f32 v{vSA+i}, v{vSA+i}, -s35, s35")

    polls = []
    def wait_L(need):
        n = len(polls)
        body = [f"L_pent{n}:", f"s_cmp_eq_u32 {need}, {sEnd}", "s_cbranch_scc1 L_fin", f"L_poll{n}:", f"ds_read_b32 v{vTmp}, v1", "s_sub_u32 s25, s25, 1", "s_cbranch_scc1 L_end1", "s_waitcnt lgkmcnt(0)",
                f"v_readfirstlane_b32 {sL}, v{vTmp}", f"s_cmp_ge_i32 {sL}, {need}", f"s_cbranch_scc1 L_ok{n}"]
        if csleep: body.append(f"s_sleep {csleep}")
        body.append(f"s_branch L_poll{n}")
        polls.append(body)
        return [f"s_cmp_ge_i32 {sL}, {need}", f"s_cbranch_scc0 L_pent{n}", f"L_ok{n}:"]
    def k_reads(slot): return [f"ds_read_b128 {vr(vK+4*j,4)}, v{vKa+j} offset:{slot*8192}" for j in range(8)]
    def v_reads(slot):
        return [f"ds_read_b64_tr_b16 {vr(vV+(t*4+n)*4+2*u,2)}, v{vVa+n} offset:{slot*8192+t*4096+u*2048}" for t in range(2) for n in range(4) for u in range(2)]
    def qk(S, first_c):
        return [f"v_mfma_f32_32x32x16_bf16 {vr(S,16)}, {vr(vK+4*j,4)}, {vr(vQ+4*j,4)}, {first_c if j == 0 else vr(S,16)}" for j in range(8)]
    def pv(X):
        return [f"v_mfma_f32_32x32x16_bf16 {vr(vO+16*n,16)}, {vr(vV+(t*4+n)*4,4)}, {vr(vP[X]+4*t,4)}, {vr(vO+16*n,16)}" for t in range(2) for n in range(4)]
    def softmax(S, X, k0, k1):
        def T(k, e): return vT + 2*(k % 4) + e
        def Pk(k): return vP[X] + k
        F = lambda k: [f"v_fma_f32 v{T(k,e)}, v{S+2*k+e}, {sC}, -v{vM}" for e in range(2)]
        E = lambda k: [f"v_exp_f32 v{T(k,e)}, v{T(k,e)}" for e in range(2)]
        def AC(k):
            if k == 0: r = [f"v_add_f32 v{vAcc0}, v{T(k,0)}, v{T(k,1)}"]
            elif k == 1: r = [f"v_add_f32 v{vAcc1}, v{T(k,0)}, v{T(k,1)}"]
            else: r = [f"v_add_f32 v{vAcc0}, v{vAcc0}, v{T(k,0)}", f"v_add_f32 v{vAcc1}, v{vAcc1}, v{T(k,1)}"]
            return r + [f"v_cvt_pk_bf16_f32 v{Pk(k)}, v{T(k,0)}, v{T(k,1)}"]
        out = F(k0) + F(k0+1) + E(k0)
        for k in range(k0, k1):
            if k + 2 < k1: out += F(k+2)
            if k + 1 < k1: out += E(k+1)
            out += AC(k)
        if k1 == 8: out += [f"v_add_f32 v{vAcc0}, v{vAcc0}, v{vAcc1}"]
        return out

    A(f"s_mov_b32 {sNK}, 1")
    A(wait_L(sNK)); A(k_reads(0))
    A("s_waitcnt lgkmcnt(0)")
    A(qk(vSA, vr(vSA,16)))
    A(f"s_mov_b32 {sNK}, 2")
    A(wait_L(sNK)); A(k_reads(1))
    A(f"s_mov_b32 {sNV}, 4")
    A(wait_L(sNV))
    A("s_waitcnt lgkmcnt(0)")
    if diag: A("s_memrealtime s[82:83]"); A("s_memtime s[88:89]"); A("s_waitcnt lgkmcnt(0)")
    stubs = []
    def flt(L):
        ds = [d for d in drop.split(',') if d]
        return [x for x in L if not any(x.startswith(d) for d in ds)]
    def take(stream, budget):
        out = []; c = 0
        while stream and c + cost(stream[0]) <= budget + 0.5 * (cost(stream[0]) - 1):
            c += cost(stream[0]); out.append(stream.pop(0))
        return out
    full = softmax(vSA, 'A', 0, 8)
    tmp = list(full); nB = 0
    for bud in budB: nB += len(take(tmp, bud))
    A(".p2align 3")
    for i in range(NS):
        X, Y = ('A', 'B') if i % 2 == 0 else ('B', 'A')
        Scur, Snext = (vSA, vSB) if X == 'A' else (vSB, vSA)
        A.label(f"L_body{i}")
        B = []
        q = qk(Snext, "0"); vrd = v_reads(i); kr = k_reads((i + 2) % NS); p = pv(X)
        st = softmax(Scur, X, 0, 8)[nB:]
        for g in range(7):
            B.append(q[g])
            B += vrd[:vper[g]]; vrd = vrd[vper[g]:]
            B += take(st, budA[g]) if g < 6 else st
        assert not vrd
        B.append(f"v_cmp_nge_f32 vcc, {sTHR}, v{vAcc0}")
        B.append(q[7]); B.append("s_waitcnt lgkmcnt(4)")
        B += kr[0:3]
        if not drop: B.append(f"s_cbranch_vccnz L_stub{i}")
        B.append(f"L_cont{i}:")
        stubs.append([f"L_stub{i}:", f"s_call_b64 s[62:63], L_slow{X}", f"s_branch L_cont{i}"])
        st = softmax(Snext, Y, 0, 8)[:nB]
        B.append(p[0]); B += kr[3:6]; B += [f"v_add_f32 v{vL}, v{vL}, v{vAcc0}", f"v_add_u32 v{vProg}, 1, v{vProg}"]
        B.append(p[1]); B += kr[6:8]; B += take(st, budB[0])
        B.append(p[2]); B.append("s_waitcnt lgkmcnt(8)"); B.append(f"ds_write_b32 v{vProgA}, v{vProg}"); B += take(st, budB[1])
        B.append(p[3]); B += take(st, budB[2])
        B.append(p[4]); B += take(st, budB[3])
        B.append(p[5]); B.append(f"s_add_u32 {sNV}, {sNV}, 2"); B += take(st, budB[4])
        w = wait_L(sNV)
        B.append(p[6]); B.append(w[0]); B += take(st, budB[5])
        B.append(p[7]); B.append("s_waitcnt lgkmcnt(0)"); B += take(st, budB[6])
        assert not st
        if i < NS - 1: B += w[1:]
        else:
            n = len(polls) - 1
            B += ["s_cbranch_scc1 L_body0", f"s_branch L_pent{n}"]
            polls[n] = [x.replace(f"L_ok{n}", "L_body0") for x in polls[n]]
        A(flt(B))
    A.label("L_fin")
    if diag: A("s_memrealtime s[84:85]"); A("s_memtime s[90:91]")
    A(f"v_mov_b32 v{vT}, v{vL}")
    A("s_mov_b32 s44, s20"); A("s_mov_b32 s45, s21")
    A(f"v_permlane32_swap_b32 v{vT}, v{vL}")
    A("s_mov_b32 s46, 0x4000000"); A("s_mov_b32 s47, 0x20000")
    A(f"v_add_f32 v{vL}, v{vL}, v{vT}")
    A("v_lshlrev_b32 v12, 4, v0")
    A("v_lshlrev_b32 v13, 3, v0")
    A("s_add_u32 s35, s3, 3")
    A.label("L_role")
    A(f"ds_read_b32 v{vTmp}, v1 offset:4"); A("s_sub_u32 s25, s25, 1"); A("s_cbranch_scc1 L_end1"); A("s_waitcnt lgkmcnt(0)")
    A(f"v_readfirstlane_b32 s34, v{vTmp}")
    A("s_cmp_ge_u32 s34, s35"); A("s_condbranch_placeholder")
    A.L[-1] = "s_cbranch_scc1 L_recv"
    A("s_cmp_eq_u32 s34, 1"); A("s_cbranch_scc0 L_role")
    A(f"s_mul_i32 s35, s2, {OB_WG}"); A(f"s_add_u32 s35, s35, {OUTBOX}")
    A("s_lshl_b32 s34, s3, 9"); A("s_add_u32 s34, s34, s35"); A("s_add_u32 s34, s34, 65536")
    A(f"buffer_store_dwordx2 {vr(vM,2)}, v13, s[44:47], s34 offen sc1")
    A("s_lshl_b32 s34, s3, 14"); A("s_add_u32 s35, s35, s34")
    for i in range(16):
        if i % 4 == 0 and i: A(f"s_add_u32 s35, s35, 4096")
        A(f"buffer_store_dwordx4 {vr(vO+4*i,4)}, v12, s[44:47], s35 offen offset:{(i%4)*1024} sc1")
    A("s_lshl_b32 s35, s2, 7"); A("s_lshl_b32 s34, s3, 2"); A("s_add_u32 s35, s35, s34"); A(f"s_add_u32 s35, s35, {FLAGS}")
    A("v_mov_b32 v14, 1"); A("v_mov_b32 v15, 0")
    A("s_waitcnt vmcnt(0)")
    A("s_mov_b64 exec, 1")
    A("buffer_store_dword v14, v15, s[44:47], s35 offen sc1")
    A("s_mov_b64 exec, -1")
    A("s_branch L_done")
    A.label("L_recv")
    A("s_add_u32 s34, s24, s3"); A("s_and_b32 s34, s34, 7"); A("s_lshl_b32 s34, s34, 13")
    A("s_lshl_b32 s35, s3, 9"); A(f"s_add_u32 s35, s35, {MLB}")
    A("v_add_u32 v13, s35, v13")
    A("ds_read_b64 v[16:17], v13")
    A("v_add_u32 v14, s34, v12"); A(f"v_add_u32 v15, {VRING}, v14")
    for i in range(16):
        A(f"ds_read_b128 {vr(vK+4*i,4)}, v{14 if i < 8 else 15} offset:{(i%8)*1024}")
        if i == 7:
            A("s_waitcnt lgkmcnt(8)")
            A(f"v_max_f32 v18, v{vM}, v16")
            A(f"v_sub_f32 v19, v{vM}, v18"); A("v_sub_f32 v21, v16, v18")
            A("v_exp_f32 v19, v19"); A("v_exp_f32 v21, v21")
    A(f"v_mul_f32 v18, v{vL}, v19"); A("v_fma_f32 v18, v17, v21, v18")
    A("v_rcp_f32 v18, v18")
    A("v_and_b32 v20, 15, v24"); A("v_lshlrev_b32 v20, 4, v20")
    A("v_mul_f32 v19, v19, v18"); A("v_mul_f32 v21, v21, v18")
    A("v_add_u32 v20, v20, v26")
    A("v_lshl_add_u32 v20, v25, 3, v20")
    A("v_add_u32 v20, s34, v20")
    A("v_lshrrev_b32 v23, 4, v0")
    A("v_and_b32 v22, 15, v0")
    A("v_xor_b32 v22, v22, v23")
    A("v_lshlrev_b32 v22, 4, v22")
    A("v_lshl_add_u32 v22, v23, 8, v22")
    A("v_add_u32 v22, s34, v22")
    for i in range(64): A(f"v_mul_f32 v{vO+i}, v{vO+i}, v19")
    A("s_waitcnt lgkmcnt(0)")
    for q in range(16):
        for e in range(4): A(f"v_fma_f32 v{vO+4*q+e}, v{vK+4*q+e}, v21, v{vO+4*q+e}")
        A(f"v_cvt_pk_bf16_f32 v{vT+2*(q%4)}, v{vO+4*q}, v{vO+4*q+1}")
        A(f"v_cvt_pk_bf16_f32 v{vT+2*(q%4)+1}, v{vO+4*q+2}, v{vO+4*q+3}")
        A(f"v_xor_b32 v23, {16*q}, v20")
        A(f"ds_write_b64 v23, {vr(vT+2*(q%4),2)}")
    A("s_mov_b32 s40, s16"); A("s_mov_b32 s41, s17"); A("s_mov_b32 s42, 0x400000"); A("s_mov_b32 s43, 0x20000")
    A("s_waitcnt lgkmcnt(0)")
    for k in range(8):
        A(f"v_xor_b32 v23, {((4*k)&15)*16}, v22")
        A(f"ds_read_b128 {vr(vK+4*k,4)}, v23 offset:{k*1024}")
    for k in range(8):
        if k == 4: A("s_add_u32 s33, s33, 4096")
        A(f"s_waitcnt lgkmcnt({7-k})")
        A(f"buffer_store_dwordx4 {vr(vK+4*k,4)}, v12, s[40:43], s33 offen offset:{(k%4)*1024} {stflags}")
    A.label("L_done")
    if diag:
        A("s_waitcnt vmcnt(0)")
        A("s_memrealtime s[86:87]")
        A("s_cmp_lg_u32 s3, 0"); A("s_cbranch_scc1 L_end1")
        A("s_waitcnt lgkmcnt(0)")
        A("s_sub_u32 s90, s90, s88")
        for i in range(8): A(f"v_mov_b32 v{16+i}, s{80+i}")
        A("v_mov_b32 v24, s90")
        A("s_lshl_b32 s34, s2, 6"); A("v_mov_b32 v15, 0")
        A("s_mov_b64 exec, 1")
        A("s_lshl_b32 s35, s2, 4"); A("s_add_u32 s35, s35, 65536")
        A("buffer_store_dword v24, v15, s[44:47], s35 offen")
        A("buffer_store_dwordx4 v[16:19], v15, s[44:47], s34 offen")
        A("buffer_store_dwordx4 v[20:23], v15, s[44:47], s34 offen offset:16")
    A.label("L_end1")
    A("s_endpgm")
    for p in polls: A(p)
    for p in stubs: A(p)
    def slow(X, S):
        A.label(f"L_slow{X}")
        t0, t1 = vT, vT + 1
        A(f"v_max3_f32 v{t0}, v{S}, v{S+1}, v{S+2}")
        for i in range(3, 15, 2): A(f"v_max3_f32 v{t0}, v{t0}, v{S+i}, v{S+i+1}")
        A(f"v_max_f32 v{t0}, v{t0}, v{S+15}")
        A(f"v_mov_b32 v{t1}, v{t0}"); A("s_nop 1")
        A(f"v_permlane32_swap_b32 v{t0}, v{t1}"); A("s_nop 1")
        A(f"v_max_f32 v{t0}, v{t0}, v{t1}")
        A(f"v_mul_f32 v{t0}, {sC}, v{t0}")
        A(f"v_max_f32 v{t0}, v{t0}, v{vM}")
        A(f"v_sub_f32 v{t1}, v{vM}, v{t0}")
        A(f"v_exp_f32 v{t1}, v{t1}")
        A(f"v_mov_b32 v{vM}, v{t0}")
        A(f"v_mul_f32 v{vL}, v{vL}, v{t1}")
        for i in range(64): A(f"v_mul_f32 v{vO+i}, v{vO+i}, v{t1}")
        A(softmax(S, X, 0, 8))
        A("s_setpc_b64 s[62:63]")
    slow('A', vSA)
    slow('B', vSB)
    A('.section .rodata,"a"'); A(".p2align 6")
    A(f".amdhsa_kernel {KNAME}")
    A(".amdhsa_next_free_vgpr 248"); A(".amdhsa_next_free_sgpr 96"); A(".amdhsa_accum_offset 248")
    A(".amdhsa_group_segment_fixed_size 0"); A(".amdhsa_kernarg_size 72"); A(".amdhsa_user_sgpr_count 2")
    A(".amdhsa_user_sgpr_kernarg_segment_ptr 1"); A(".amdhsa_system_sgpr_workgroup_id_x 1")
    A(".end_amdhsa_kernel")
    return A.text()

if __name__ == '__main__':
    kw = eval("dict(%s)" % (sys.argv[2] if len(sys.argv) > 2 else ""))
    open(sys.argv[1], 'w').write(gen(**kw))
```

```python
import sys, math, struct
KNAME = "standalone__tree_speculative_verify_tree_attention_over_candidate_token_tree__sampling_kernel"
def f2u(x): return struct.unpack('<I', struct.pack('<f', x))[0]

class Asm:
    def __init__(self): self.L = []
    def __call__(self, s):
        if isinstance(s, list):
            for x in s: self(x)
        else: self.L.append(s)
    def label(self, s): self.L.append(s + ":")
    def text(self): return "\n".join(("    " + l if not l.endswith(":") and not l.startswith(";") and not l.startswith(".") else l) for l in self.L) + "\n"

def cost(x):
    if isinstance(x, list): return sum(cost(y) for y in x)
    if x.endswith(':'): return 0
    return 2 if x.startswith('v_exp') else 1

def interleave(mf, fill, pre=0.0):
    out = []
    tot = sum(cost(f) for f in fill)
    n = len(mf); idx = 0; acc = 0
    for i, m in enumerate(mf):
        out.append(m)
        tgt = tot * (i + 1) / n
        while idx < len(fill) and acc + cost(fill[idx]) / 2.0 <= tgt:
            out.append(fill[idx]); acc += cost(fill[idx]); idx += 1
    out += fill[idx:]
    return out

def merge(a, b, ra=1, rb=1):
    out = []; i = j = 0
    while i < len(a) or j < len(b):
        for _ in range(ra):
            if i < len(a): out.append(a[i]); i += 1
        for _ in range(rb):
            if j < len(b): out.append(b[j]); j += 1
    return out

def gen(W=24, ldflags='nt', vflags=None, qflags='', stflags='', diag=0, thr=1024.0, treehalf=0, nomem=0,
        lsleep=1, csleep=1, fsleep=4, drop='', budA=(4,4,4,4,5,5,9), budB=(4,5,6,6,6,6,3), vper=(3,3,3,3,2,2,0), probe=None):
    if probe: diag = 2
    A = Asm()
    NS = 8
    VRING = NS * 8192
    MLB = 2 * NS * 8192
    CTL = MLB + 2048
    LDS = CTL + 64
    OUTBOX = 1 << 20
    OB_WG = 4 * 16384 + 2048
    FLAGS = 32 << 20
    SPIN = 1 << 22
    def vr(b, n=1): return f"v{b}" if n == 1 else f"v[{b}:{b+n-1}]"
    A(f"; @launch grid=(256,1,1) block=(320,1,1) lds={LDS}")
    A('.amdgcn_target "amdgcn-amd-amdhsa--gfx950"')
    A(".text"); A(f".globl {KNAME}"); A(".p2align 8"); A(f".type {KNAME},@function"); A.label(KNAME)
    A("s_cmp_ge_u32 s2, 256"); A("s_cbranch_scc1 L_end0")
    if diag: A("s_memrealtime s[80:81]")
    A("s_load_dwordx16 s[4:19], s[0:1], 0")
    A("s_load_dwordx2 s[20:21], s[0:1], 64")
    A("v_lshrrev_b32 v1, 6, v0")
    A("v_and_b32 v0, 63, v0")
    A("v_readfirstlane_b32 s3, v1")
    A("s_lshr_b32 s22, s2, 1")
    A("s_and_b32 s23, s2, 1")
    A(f"s_cmp_eq_u32 s23, {treehalf}")
    A("s_cselect_b32 s24, 65, 64")
    A(f"s_mov_b32 s25, {SPIN}")
    A(f"v_mov_b32 v1, {CTL}")
    A("s_cmp_lg_u32 s3, 0"); A("s_cbranch_scc1 L_consumer")

    A("s_setprio 3")
    D = (W - 2) // 8
    qstar = (W - 2) % 8
    A("v_lshrrev_b32 v2, 4, v0"); A("v_and_b32 v3, 15, v0")
    A("v_lshlrev_b32 v4, 2, v2"); A("v_xor_b32 v3, v3, v4"); A("v_lshlrev_b32 v3, 4, v3")
    A("v_lshl_add_u32 v4, v2, 8, v3")
    for k in range(1, 4): A(f"v_xor_b32 v{4+k}, {16*k}, v4")
    A("v_mov_b32 v9, 0")
    A("v_lshl_add_u32 v10, v0, 2, v1")
    A("s_mov_b64 exec, 0xffff")
    A("ds_write_b32 v10, v9")
    A("s_mov_b64 exec, -1")
    A("s_lshl_b32 s26, s2, 19")
    A("s_lshl_b32 s27, s22, 13")
    A("s_mov_b32 s38, 0x8000000"); A("s_mov_b32 s39, 0x20000")
    A("s_mov_b32 s42, 0x8000000"); A("s_mov_b32 s43, 0x20000")
    A("s_mov_b32 s47, 0x20000"); A("s_mov_b32 s51, 0x20000")
    A(f"s_cmp_eq_u32 s23, {treehalf}")
    A("s_cselect_b32 s46, 0x100000, s38"); A("s_cselect_b32 s50, 0x100000, s38")
    A("s_cselect_b32 s27, s27, s26")
    A("s_cselect_b32 s28, 0, 8192")
    A("s_mov_b32 s30, 0")
    A(f"s_mov_b32 s31, {VRING}")
    A(f"s_mov_b32 s32, {-D}")
    A("s_waitcnt lgkmcnt(0)")
    A("s_cselect_b32 s44, s10, s6"); A("s_cselect_b32 s45, s11, s7")
    A("s_cselect_b32 s48, s12, s8"); A("s_cselect_b32 s49, s13, s9")
    A("s_mov_b32 s36, s6"); A("s_mov_b32 s37, s7")
    A("s_mov_b32 s40, s8"); A("s_mov_b32 s41, s9")
    issued = [0]
    def step(srd, soff, slot, isK, startup=False):
        for q in range(8):
            if q == 0: A(f"s_mov_b32 m0, {slot}"); A(f"s_add_u32 s34, {soff}, 4096")
            if q == 4: A(f"s_add_u32 m0, {slot}, 4096"); A("s_nop 0")
            v = 4 + (q & 3) if isK else 4
            fl = ldflags if (isK or vflags is None) else vflags
            A(f"buffer_load_dwordx4 v{v}, {srd}, {soff if q < 4 else 's34'} offen offset:{(q&3)*1024} {fl} lds")
            issued[0] += 1
            if not (startup and issued[0] < W): A(f"s_waitcnt vmcnt({W-1})")
            if q == qstar:
                if startup and issued[0] < W: A("s_add_u32 s32, s32, 1")
                else: A("v_mov_b32 v8, s32"); A("s_add_u32 s32, s32, 1"); A("ds_write_b32 v1, v8")
        A(f"s_add_u32 {slot}, {slot}, 8192")
        if isK: A(f"s_and_b32 {slot}, {slot}, 0xffff")
        else: A(f"s_and_b32 {slot}, {slot}, 0xffff"); A(f"s_bitset1_b32 {slot}, 16")
    step("s[44:47]", "s27", "s30", True, True)
    A("s_add_u32 s26, s26, s28")
    A("s_mov_b32 s29, s26")
    step("s[36:39]", "s26", "s30", True, True); A("s_add_u32 s26, s26, 8192")
    A("s_barrier")
    step("s[48:51]", "s27", "s31", False, True)
    if diag: A("s_memrealtime s[88:89]")
    A("s_mov_b32 s52, s20"); A("s_mov_b32 s53, s21"); A("s_mov_b32 s54, 0x4000000"); A("s_mov_b32 s55, 0x20000")
    A("s_lshl_b32 s35, s2, 7"); A(f"s_add_u32 s35, s35, {FLAGS}")
    A("v_and_b32 v11, 3, v0"); A("v_lshlrev_b32 v12, 2, v11"); A(f"v_add_u32 v11, {CTL+16}, v12")
    A("s_mov_b64 exec, 0xf")
    A("buffer_store_dword v9, v12, s[52:55], s35 offen sc1")
    A("s_mov_b64 exec, -1")
    A("s_mov_b32 s33, 0")
    A("s_mov_b32 s56, 1")
    def space(tag):
        A("s_cmp_ge_i32 s33, s57"); A(f"s_cbranch_scc1 L_space{tag}")
        A("v_mov_b32 v13, s57")
        A.label(f"L_spoll{tag}")
        A("ds_read_b32 v14, v11"); A("s_sub_u32 s25, s25, 1"); A("s_cbranch_scc1 L_end0"); A("s_waitcnt lgkmcnt(0)")
        A("v_cmp_lt_i32 vcc, v14, v13"); A(f"s_cbranch_vccz L_sok{tag}")
        if lsleep: A(f"s_sleep {lsleep}")
        A(f"s_branch L_spoll{tag}")
        A.label(f"L_sok{tag}")
        A("v_readlane_b32 s33, v14, 0"); A("v_readlane_b32 s58, v14, 1"); A("v_readlane_b32 s59, v14, 2"); A("v_readlane_b32 s60, v14, 3")
        A("s_min_i32 s33, s33, s58"); A("s_min_i32 s59, s59, s60"); A("s_min_i32 s33, s33, s59")
        A.label(f"L_space{tag}")
    A.label("L_lloop")
    A(f"s_sub_u32 s57, s56, {NS-1}")
    space("a")
    A("s_add_u32 s56, s56, 1")
    if nomem: A(f"s_cmp_ge_u32 s56, {NS}")
    else: A("s_cmp_ge_u32 s56, s24")
    A("s_cbranch_scc1 L_lastv")
    step("s[36:39]", "s26", "s30", True); A("s_add_u32 s26, s26, 8192")
    step("s[40:43]", "s29", "s31", False); A("s_add_u32 s29, s29, 8192")
    A("s_branch L_lloop")
    A.label("L_lastv")
    step("s[40:43]", "s29", "s31", False)
    if diag: A("s_memrealtime s[82:83]")
    A("s_lshr_b32 s34, s22, 1"); A("s_lshl_b32 s34, s34, 2"); A("v_mov_b32 v15, s34")
    A("s_and_b32 s35, s22, 1"); A("s_lshl_b32 s35, s35, 4"); A("s_lshl_b32 s57, 1, s35"); A("v_mov_b32 v13, s57")
    A("s_mov_b64 exec, 1")
    A("global_atomic_add v16, v15, v13, s[18:19] sc0 sc1")
    A("s_mov_b64 exec, -1")
    assert D >= 1
    if nomem: A("s_lshl_b32 s32, s24, 1"); A(f"s_sub_u32 s32, s32, {D}"); A("s_waitcnt vmcnt(1)")
    for r in range(D, 0, -1):
        A(f"s_waitcnt vmcnt({8*r+1})")
        if r == 1: A("s_add_u32 s32, s32, 1")
        A("v_mov_b32 v8, s32"); A("s_add_u32 s32, s32, 1"); A("ds_write_b32 v1, v8")
    A("s_add_u32 s32, s32, 1")
    A("s_waitcnt vmcnt(1)")
    A("v_mov_b32 v8, s32"); A("ds_write_b32 v1, v8")
    if diag: A("s_memrealtime s[84:85]")
    A("s_waitcnt vmcnt(0)")
    A("v_readfirstlane_b32 s61, v16"); A("s_lshr_b32 s61, s61, s35"); A("s_and_b32 s61, s61, 1")
    A("s_cbranch_scc1 L_lrecv")
    A("v_mov_b32 v8, 1"); A("ds_write_b32 v1, v8 offset:4")
    A("s_branch L_ldone")
    A.label("L_lrecv")
    A("s_xor_b32 s48, s2, 1")
    A("s_lshl_b32 s35, s48, 7"); A(f"s_add_u32 s35, s35, {FLAGS}")
    A.label("L_fpoll")
    A("buffer_load_dword v14, v12, s[52:55], s35 offen sc1")
    A("s_sub_u32 s25, s25, 64"); A("s_cbranch_scc1 L_end0")
    A("s_waitcnt vmcnt(0)")
    A("v_cmp_ne_u32 vcc, 1, v14"); A("s_cbranch_vccz L_fok")
    if fsleep: A(f"s_sleep {fsleep}")
    A("s_branch L_fpoll")
    A.label("L_fok")
    A("s_sub_u32 s57, s24, 4")
    if nomem: A("s_mov_b32 s57, s24")
    space("b")
    A("v_lshlrev_b32 v3, 4, v0")
    A(f"s_mul_i32 s35, s48, {OB_WG}"); A(f"s_add_u32 s35, s35, {OUTBOX}")
    A(f"s_mov_b32 m0, {MLB}"); A("s_add_u32 s34, s35, 65536")
    for q in range(2): A(f"buffer_load_dwordx4 v3, s[52:55], s34 offen offset:{q*1024} sc1 lds")
    A("s_and_b32 s30, s24, 7"); A("s_lshl_b32 s30, s30, 13")
    def pub(k): A(f"v_mov_b32 v8, {2+k}"); A("ds_write_b32 v1, v8 offset:4")
    for r in range(4):
        for hh in range(4):
            A(f"s_add_u32 m0, s30, {(hh & 1)*4096 + (VRING if hh >= 2 else 0)}")
            A("s_nop 0")
            for q in range(4): A(f"buffer_load_dwordx4 v3, s[52:55], s35 offen offset:{q*1024} sc1 lds")
            A("s_add_u32 s35, s35, 4096")
        A("s_add_u32 s30, s30, 8192"); A("s_and_b32 s30, s30, 0xffff")
        if r == 2: A("s_waitcnt vmcnt(32)"); pub(1)
    A("s_waitcnt vmcnt(32)"); pub(2)
    A("s_waitcnt vmcnt(16)"); pub(3)
    A("s_waitcnt vmcnt(0)"); pub(4)
    A.label("L_ldone")
    A("s_waitcnt lgkmcnt(0)")
    def spin(tag):
        who, base, reg, mult = probe
        A("s_memrealtime s[86:87]"); A("s_waitcnt lgkmcnt(0)")
        A(f"s_sub_u32 s90, s{reg}, s80"); A(f"s_mul_i32 s90, s90, {mult}"); A(f"s_add_u32 s90, s90, {base*100}")
        A("s_min_u32 s90, s90, 50000")
        A.label(f"L_spin{tag}")
        A("s_sleep 2"); A("s_memrealtime s[92:93]"); A("s_waitcnt lgkmcnt(0)")
        A("s_sub_u32 s92, s92, s80"); A("s_cmp_lt_u32 s92, s90"); A(f"s_cbranch_scc1 L_spin{tag}")
    if probe and probe[0] == 'L': spin('L')
    if diag == 1:
        A("s_memrealtime s[86:87]")
        A("s_getreg_b32 s80, hwreg(HW_REG_XCC_ID)"); A("s_mov_b32 s81, s61")
        A("s_waitcnt lgkmcnt(0)")
        for i in range(8): A(f"v_mov_b32 v{16+i}, s{80+i}")
        A("s_lshl_b32 s34, s2, 6"); A("v_mov_b32 v15, 0")
        A("s_mov_b64 exec, 1")
        A("buffer_store_dwordx4 v[16:19], v15, s[52:55], s34 offen offset:32")
        A("buffer_store_dwordx4 v[20:23], v15, s[52:55], s34 offen offset:48")
    A.label("L_end0")
    A("s_endpgm")

    A.label("L_consumer")
    vQ, vO, vSA, vSB, vK, vV, vT = 32, 64, 128, 144, 160, 192, 240
    vP = {'A': 224, 'B': 232}
    vM, vL, vAcc0, vAcc1, vProgA, vProg, vTmp = 4, 5, 6, 7, 8, 9, 10
    vKa, vVa = 12, 20
    sC, sTHR, sL, sNV, sNK, sKcap, sEnd = 's26', 's27', 's28', 's29', 's30', 's31', 's32'
    A("s_sub_u32 s3, s3, 1")
    A("v_and_b32 v24, 31, v0")
    A("v_lshrrev_b32 v25, 5, v0")
    A("v_lshlrev_b32 v26, 8, v24")
    A("v_lshl_add_u32 v27, v25, 4, v26")
    A("s_lshl_b32 s33, s22, 2"); A("s_add_u32 s33, s33, s3"); A("s_lshl_b32 s33, s33, 13")
    A("s_mov_b32 s38, 0x400000"); A("s_mov_b32 s39, 0x20000")
    A("s_mov_b32 s42, 0x8000"); A("s_mov_b32 s43, 0x20000")
    A("v_lshlrev_b32 v28, 6, v24"); A("v_lshl_add_u32 v28, v25, 3, v28")
    A("s_lshr_b32 s34, s22, 3"); A("s_lshl_b32 s34, s34, 11")
    A("s_waitcnt lgkmcnt(0)")
    A("s_mov_b32 s36, s4"); A("s_mov_b32 s37, s5")
    for j in range(8):
        A(f"buffer_load_dwordx4 {vr(vQ+4*j,4)}, v27, s[36:39], s33 offen offset:{32*j} {qflags}")
    A("s_mov_b32 s40, s14"); A("s_mov_b32 s41, s15")
    for g in range(4):
        A(f"buffer_load_dwordx2 {vr(vT+2*g,2)}, v28, s[40:43], s34 offen offset:{16*g}")
    A("s_barrier")
    A("v_and_b32 v29, 3, v24"); A("v_lshlrev_b32 v29, 2, v29")
    A("v_bfe_u32 v30, v24, 2, 2"); A("v_or_b32 v29, v29, v30"); A("v_xor_b32 v29, v29, v25")
    A(f"v_lshl_add_u32 v{vKa}, v29, 4, v26")
    for j in range(1, 8): A(f"v_xor_b32 v{vKa+j}, {32*j}, v{vKa}")
    A("v_bfe_u32 v29, v0, 2, 2")
    A("v_lshl_add_u32 v30, v25, 2, v29")
    A("v_lshlrev_b32 v30, 8, v30")
    A("v_lshl_add_u32 v30, v29, 6, v30")
    A("v_bfe_u32 v29, v0, 4, 1"); A("v_lshl_add_u32 v30, v29, 5, v30")
    A("v_and_b32 v29, 3, v0"); A("v_lshl_add_u32 v30, v29, 3, v30")
    A(f"v_add_u32 v{vVa}, {VRING}, v30")
    for n in range(1, 4): A(f"v_xor_b32 v{vVa+n}, {64*n}, v{vVa}")
    A(f"s_lshl_b32 s34, s3, 2"); A(f"s_add_u32 s34, s34, {CTL+16}"); A(f"v_mov_b32 v{vProgA}, s34")
    A(f"v_mov_b32 v{vProg}, 0")
    A(f"s_mov_b32 {sC}, {hex(f2u(math.log2(math.e) / math.sqrt(128.0)))}")
    A(f"s_mov_b32 {sTHR}, {hex(f2u(thr))}")
    A(f"s_mov_b32 {sL}, 0")
    A(f"v_mov_b32 v{vM}, 0xff800000"); A(f"v_mov_b32 v{vL}, 0")
    A(f"v_mov_b32 v{vAcc0}, 0x7f800000"); A(f"v_mov_b32 v{vAcc1}, 0")
    for i in range(64): A(f"v_mov_b32 v{vO+i}, 0")
    A(f"s_mov_b32 s35, {hex(f2u(-1e9 * math.sqrt(128.0)))}")
    A(f"s_cmp_eq_u32 s23, {treehalf}")
    A("s_cselect_b32 s35, s35, 0")
    A(f"s_lshl_b32 {sEnd}, s24, 1"); A(f"s_add_u32 {sEnd}, {sEnd}, 4")
    A("s_waitcnt vmcnt(0)")
    for g in range(4):
        for i in range(4):
            src = vT + 2*g + i//2
            if i % 2 == 0: A(f"v_lshlrev_b32 v{vSA+4*g+i}, 16, v{src}")
            else: A(f"v_and_b32 v{vSA+4*g+i}, 0xffff0000, v{src}")
    for i in range(16): A(f"v_fma_f32 v{vSA+i}, v{vSA+i}, -s35, s35")

    polls = []
    def wait_L(need):
        n = len(polls)
        body = [f"L_pent{n}:", f"s_cmp_eq_u32 {need}, {sEnd}", "s_cbranch_scc1 L_fin", f"L_poll{n}:", f"ds_read_b32 v{vTmp}, v1", "s_sub_u32 s25, s25, 1", "s_cbranch_scc1 L_end1", "s_waitcnt lgkmcnt(0)",
                f"v_readfirstlane_b32 {sL}, v{vTmp}", f"s_cmp_ge_i32 {sL}, {need}", f"s_cbranch_scc1 L_ok{n}"]
        if csleep: body.append(f"s_sleep {csleep}")
        body.append(f"s_branch L_poll{n}")
        polls.append(body)
        return [f"s_cmp_ge_i32 {sL}, {need}", f"s_cbranch_scc0 L_pent{n}", f"L_ok{n}:"]
    def k_reads(slot): return [f"ds_read_b128 {vr(vK+4*j,4)}, v{vKa+j} offset:{slot*8192}" for j in range(8)]
    def v_reads(slot):
        return [f"ds_read_b64_tr_b16 {vr(vV+(t*4+n)*4+2*u,2)}, v{vVa+n} offset:{slot*8192+t*4096+u*2048}" for t in range(2) for n in range(4) for u in range(2)]
    def qk(S, first_c):
        return [f"v_mfma_f32_32x32x16_bf16 {vr(S,16)}, {vr(vK+4*j,4)}, {vr(vQ+4*j,4)}, {first_c if j == 0 else vr(S,16)}" for j in range(8)]
    def pv(X):
        return [f"v_mfma_f32_32x32x16_bf16 {vr(vO+16*n,16)}, {vr(vV+(t*4+n)*4,4)}, {vr(vP[X]+4*t,4)}, {vr(vO+16*n,16)}" for t in range(2) for n in range(4)]
    def softmax(S, X, k0, k1):
        def T(k, e): return vT + 2*(k % 4) + e
        def Pk(k): return vP[X] + k
        F = lambda k: [f"v_fma_f32 v{T(k,e)}, v{S+2*k+e}, {sC}, -v{vM}" for e in range(2)]
        E = lambda k: [f"v_exp_f32 v{T(k,e)}, v{T(k,e)}" for e in range(2)]
        def AC(k):
            if k == 0: r = [f"v_add_f32 v{vAcc0}, v{T(k,0)}, v{T(k,1)}"]
            elif k == 1: r = [f"v_add_f32 v{vAcc1}, v{T(k,0)}, v{T(k,1)}"]
            else: r = [f"v_add_f32 v{vAcc0}, v{vAcc0}, v{T(k,0)}", f"v_add_f32 v{vAcc1}, v{vAcc1}, v{T(k,1)}"]
            return r + [f"v_cvt_pk_bf16_f32 v{Pk(k)}, v{T(k,0)}, v{T(k,1)}"]
        out = F(k0) + F(k0+1) + E(k0)
        for k in range(k0, k1):
            if k + 2 < k1: out += F(k+2)
            if k + 1 < k1: out += E(k+1)
            out += AC(k)
        if k1 == 8: out += [f"v_add_f32 v{vAcc0}, v{vAcc0}, v{vAcc1}"]
        return out

    A(f"s_mov_b32 {sNK}, 1")
    A(wait_L(sNK)); A(k_reads(0))
    A("s_waitcnt lgkmcnt(0)")
    A(qk(vSA, vr(vSA,16)))
    A(f"s_mov_b32 {sNK}, 2")
    A(wait_L(sNK)); A(k_reads(1))
    A(f"s_mov_b32 {sNV}, 4")
    A(wait_L(sNV))
    A("s_waitcnt lgkmcnt(0)")
    if diag: A("s_memrealtime s[82:83]"); A("s_memtime s[88:89]"); A("s_waitcnt lgkmcnt(0)")
    stubs = []
    def flt(L):
        ds = [d for d in drop.split(',') if d]
        return [x for x in L if not any(x.startswith(d) for d in ds)]
    def take(stream, budget):
        out = []; c = 0
        while stream and c + cost(stream[0]) <= budget + 0.5 * (cost(stream[0]) - 1):
            c += cost(stream[0]); out.append(stream.pop(0))
        return out
    full = softmax(vSA, 'A', 0, 8)
    tmp = list(full); nB = 0
    for bud in budB: nB += len(take(tmp, bud))
    A(".p2align 3")
    for i in range(NS):
        X, Y = ('A', 'B') if i % 2 == 0 else ('B', 'A')
        Scur, Snext = (vSA, vSB) if X == 'A' else (vSB, vSA)
        A.label(f"L_body{i}")
        B = []
        q = qk(Snext, "0"); vrd = v_reads(i); kr = k_reads((i + 2) % NS); p = pv(X)
        st = softmax(Scur, X, 0, 8)[nB:]
        for g in range(7):
            B.append(q[g])
            B += vrd[:vper[g]]; vrd = vrd[vper[g]:]
            B += take(st, budA[g]) if g < 6 else st
        assert not vrd
        B.append(f"v_cmp_nge_f32 vcc, {sTHR}, v{vAcc0}")
        B.append(q[7]); B.append("s_waitcnt lgkmcnt(4)")
        B += kr[0:3]
        if not drop: B.append(f"s_cbranch_vccnz L_stub{i}")
        B.append(f"L_cont{i}:")
        stubs.append([f"L_stub{i}:", f"s_call_b64 s[62:63], L_slow{X}", f"s_branch L_cont{i}"])
        st = softmax(Snext, Y, 0, 8)[:nB]
        B.append(p[0]); B += kr[3:6]; B += [f"v_add_f32 v{vL}, v{vL}, v{vAcc0}", f"v_add_u32 v{vProg}, 1, v{vProg}"]
        B.append(p[1]); B += kr[6:8]; B += take(st, budB[0])
        B.append(p[2]); B.append("s_waitcnt lgkmcnt(8)"); B.append(f"ds_write_b32 v{vProgA}, v{vProg}"); B += take(st, budB[1])
        B.append(p[3]); B += take(st, budB[2])
        B.append(p[4]); B += take(st, budB[3])
        B.append(p[5]); B.append(f"s_add_u32 {sNV}, {sNV}, 2"); B += take(st, budB[4])
        w = wait_L(sNV)
        B.append(p[6]); B.append(w[0]); B += take(st, budB[5])
        B.append(p[7]); B.append("s_waitcnt lgkmcnt(0)"); B += take(st, budB[6])
        assert not st
        if i < NS - 1: B += w[1:]
        else:
            n = len(polls) - 1
            B += ["s_cbranch_scc1 L_body0", f"s_branch L_pent{n}"]
            polls[n] = [x.replace(f"L_ok{n}", "L_body0") for x in polls[n]]
        A(flt(B))
    A.label("L_fin")
    if diag: A("s_memrealtime s[84:85]"); A("s_memtime s[90:91]")
    A(f"v_mov_b32 v{vT}, v{vL}")
    A("s_mov_b32 s44, s20"); A("s_mov_b32 s45, s21")
    A(f"v_permlane32_swap_b32 v{vT}, v{vL}")
    A("s_mov_b32 s46, 0x4000000"); A("s_mov_b32 s47, 0x20000")
    A(f"v_add_f32 v{vL}, v{vL}, v{vT}")
    A("v_lshlrev_b32 v12, 4, v0")
    A("v_lshlrev_b32 v13, 3, v0")
    A("s_add_u32 s35, s3, 3")
    A.label("L_role")
    A(f"ds_read_b32 v{vTmp}, v1 offset:4"); A("s_sub_u32 s25, s25, 1"); A("s_cbranch_scc1 L_end1"); A("s_waitcnt lgkmcnt(0)")
    A(f"v_readfirstlane_b32 s34, v{vTmp}")
    A("s_cmp_ge_u32 s34, s35"); A("s_condbranch_placeholder")
    A.L[-1] = "s_cbranch_scc1 L_recv"
    A("s_cmp_eq_u32 s34, 1"); A("s_cbranch_scc0 L_role")
    A(f"s_mul_i32 s35, s2, {OB_WG}"); A(f"s_add_u32 s35, s35, {OUTBOX}")
    A("s_lshl_b32 s34, s3, 9"); A("s_add_u32 s34, s34, s35"); A("s_add_u32 s34, s34, 65536")
    A(f"buffer_store_dwordx2 {vr(vM,2)}, v13, s[44:47], s34 offen sc1")
    A("s_lshl_b32 s34, s3, 14"); A("s_add_u32 s35, s35, s34")
    for i in range(16):
        if i % 4 == 0 and i: A(f"s_add_u32 s35, s35, 4096")
        A(f"buffer_store_dwordx4 {vr(vO+4*i,4)}, v12, s[44:47], s35 offen offset:{(i%4)*1024} sc1")
    A("s_lshl_b32 s35, s2, 7"); A("s_lshl_b32 s34, s3, 2"); A("s_add_u32 s35, s35, s34"); A(f"s_add_u32 s35, s35, {FLAGS}")
    A("v_mov_b32 v14, 1"); A("v_mov_b32 v15, 0")
    A("s_waitcnt vmcnt(0)")
    A("s_mov_b64 exec, 1")
    A("buffer_store_dword v14, v15, s[44:47], s35 offen sc1")
    A("s_mov_b64 exec, -1")
    A("s_branch L_done")
    A.label("L_recv")
    A("s_add_u32 s34, s24, s3"); A("s_and_b32 s34, s34, 7"); A("s_lshl_b32 s34, s34, 13")
    A("s_lshl_b32 s35, s3, 9"); A(f"s_add_u32 s35, s35, {MLB}")
    A("v_add_u32 v13, s35, v13")
    A("ds_read_b64 v[16:17], v13")
    A("v_add_u32 v14, s34, v12"); A(f"v_add_u32 v15, {VRING}, v14")
    for i in range(16):
        A(f"ds_read_b128 {vr(vK+4*i,4)}, v{14 if i < 8 else 15} offset:{(i%8)*1024}")
        if i == 7:
            A("s_waitcnt lgkmcnt(8)")
            A(f"v_max_f32 v18, v{vM}, v16")
            A(f"v_sub_f32 v19, v{vM}, v18"); A("v_sub_f32 v21, v16, v18")
            A("v_exp_f32 v19, v19"); A("v_exp_f32 v21, v21")
    A(f"v_mul_f32 v18, v{vL}, v19"); A("v_fma_f32 v18, v17, v21, v18")
    A("v_rcp_f32 v18, v18")
    A("v_and_b32 v20, 15, v24"); A("v_lshlrev_b32 v20, 4, v20")
    A("v_mul_f32 v19, v19, v18"); A("v_mul_f32 v21, v21, v18")
    A("v_add_u32 v20, v20, v26")
    A("v_lshl_add_u32 v20, v25, 3, v20")
    A("v_add_u32 v20, s34, v20")
    A("v_lshrrev_b32 v23, 4, v0")
    A("v_and_b32 v22, 15, v0")
    A("v_xor_b32 v22, v22, v23")
    A("v_lshlrev_b32 v22, 4, v22")
    A("v_lshl_add_u32 v22, v23, 8, v22")
    A("v_add_u32 v22, s34, v22")
    for i in range(64): A(f"v_mul_f32 v{vO+i}, v{vO+i}, v19")
    A("s_waitcnt lgkmcnt(0)")
    for q in range(16):
        for e in range(4): A(f"v_fma_f32 v{vO+4*q+e}, v{vK+4*q+e}, v21, v{vO+4*q+e}")
        A(f"v_cvt_pk_bf16_f32 v{vT+2*(q%4)}, v{vO+4*q}, v{vO+4*q+1}")
        A(f"v_cvt_pk_bf16_f32 v{vT+2*(q%4)+1}, v{vO+4*q+2}, v{vO+4*q+3}")
        A(f"v_xor_b32 v23, {16*q}, v20")
        A(f"ds_write_b64 v23, {vr(vT+2*(q%4),2)}")
    A("s_mov_b32 s40, s16"); A("s_mov_b32 s41, s17"); A("s_mov_b32 s42, 0x400000"); A("s_mov_b32 s43, 0x20000")
    A("s_waitcnt lgkmcnt(0)")
    for k in range(8):
        A(f"v_xor_b32 v23, {((4*k)&15)*16}, v22")
        A(f"ds_read_b128 {vr(vK+4*k,4)}, v23 offset:{k*1024}")
    for k in range(8):
        if k == 4: A("s_add_u32 s33, s33, 4096")
        A(f"s_waitcnt lgkmcnt({7-k})")
        A(f"buffer_store_dwordx4 {vr(vK+4*k,4)}, v12, s[40:43], s33 offen offset:{(k%4)*1024} {stflags}")
    A.label("L_done")
    if probe and probe[0] == 'C':
        A("s_waitcnt vmcnt(0)"); spin('C')
    if diag == 1:
        A("s_waitcnt vmcnt(0)")
        A("s_memrealtime s[86:87]")
        A("s_cmp_lg_u32 s3, 0"); A("s_cbranch_scc1 L_end1")
        A("s_waitcnt lgkmcnt(0)")
        A("s_sub_u32 s90, s90, s88")
        for i in range(8): A(f"v_mov_b32 v{16+i}, s{80+i}")
        A("v_mov_b32 v24, s90")
        A("s_lshl_b32 s34, s2, 6"); A("v_mov_b32 v15, 0")
        A("s_mov_b64 exec, 1")
        A("s_lshl_b32 s35, s2, 4"); A("s_add_u32 s35, s35, 65536")
        A("buffer_store_dword v24, v15, s[44:47], s35 offen")
        A("buffer_store_dwordx4 v[16:19], v15, s[44:47], s34 offen")
        A("buffer_store_dwordx4 v[20:23], v15, s[44:47], s34 offen offset:16")
    A.label("L_end1")
    A("s_endpgm")
    for p in polls: A(p)
    for p in stubs: A(p)
    def slow(X, S):
        A.label(f"L_slow{X}")
        t0, t1 = vT, vT + 1
        A(f"v_max3_f32 v{t0}, v{S}, v{S+1}, v{S+2}")
        for i in range(3, 15, 2): A(f"v_max3_f32 v{t0}, v{t0}, v{S+i}, v{S+i+1}")
        A(f"v_max_f32 v{t0}, v{t0}, v{S+15}")
        A(f"v_mov_b32 v{t1}, v{t0}"); A("s_nop 1")
        A(f"v_permlane32_swap_b32 v{t0}, v{t1}"); A("s_nop 1")
        A(f"v_max_f32 v{t0}, v{t0}, v{t1}")
        A(f"v_mul_f32 v{t0}, {sC}, v{t0}")
        A(f"v_max_f32 v{t0}, v{t0}, v{vM}")
        A(f"v_sub_f32 v{t1}, v{vM}, v{t0}")
        A(f"v_exp_f32 v{t1}, v{t1}")
        A(f"v_mov_b32 v{vM}, v{t0}")
        A(f"v_mul_f32 v{vL}, v{vL}, v{t1}")
        for i in range(64): A(f"v_mul_f32 v{vO+i}, v{vO+i}, v{t1}")
        A(softmax(S, X, 0, 8))
        A("s_setpc_b64 s[62:63]")
    slow('A', vSA)
    slow('B', vSB)
    A('.section .rodata,"a"'); A(".p2align 6")
    A(f".amdhsa_kernel {KNAME}")
    A(".amdhsa_next_free_vgpr 248"); A(".amdhsa_next_free_sgpr 96"); A(".amdhsa_accum_offset 248")
    A(".amdhsa_group_segment_fixed_size 0"); A(".amdhsa_kernarg_size 72"); A(".amdhsa_user_sgpr_count 2")
    A(".amdhsa_user_sgpr_kernarg_segment_ptr 1"); A(".amdhsa_system_sgpr_workgroup_id_x 1")
    A(".end_amdhsa_kernel")
    return A.text()

if __name__ == '__main__':
    kw = eval("dict(%s)" % (sys.argv[2] if len(sys.argv) > 2 else ""))
    open(sys.argv[1], 'w').write(gen(**kw))
```

```python
import sys, math, struct
KNAME = "standalone__tree_speculative_verify_tree_attention_over_candidate_token_tree__sampling_kernel"
def f2u(x): return struct.unpack('<I', struct.pack('<f', x))[0]

class Asm:
    def __init__(self): self.L = []
    def __call__(self, s):
        if isinstance(s, list):
            for x in s: self(x)
        else: self.L.append(s)
    def label(self, s): self.L.append(s + ":")
    def text(self): return "\n".join(("    " + l if not l.endswith(":") and not l.startswith(";") and not l.startswith(".") else l) for l in self.L) + "\n"

def cost(x):
    if isinstance(x, list): return sum(cost(y) for y in x)
    if x.endswith(':'): return 0
    return 2 if x.startswith('v_exp') else 1

def interleave(mf, fill, pre=0.0):
    out = []
    tot = sum(cost(f) for f in fill)
    n = len(mf); idx = 0; acc = 0
    for i, m in enumerate(mf):
        out.append(m)
        tgt = tot * (i + 1) / n
        while idx < len(fill) and acc + cost(fill[idx]) / 2.0 <= tgt:
            out.append(fill[idx]); acc += cost(fill[idx]); idx += 1
    out += fill[idx:]
    return out

def merge(a, b, ra=1, rb=1):
    out = []; i = j = 0
    while i < len(a) or j < len(b):
        for _ in range(ra):
            if i < len(a): out.append(a[i]); i += 1
        for _ in range(rb):
            if j < len(b): out.append(b[j]); j += 1
    return out

def gen(W=24, ldflags='nt', vflags=None, qflags='', stflags='', diag=0, thr=1024.0, treehalf=0, nomem=0,
        lsleep=1, csleep=1, fsleep=4, drop='', budA=(4,4,4,4,5,5,9), budB=(4,5,6,6,6,6,3), vper=(3,3,3,3,2,2,0), probe=None, trace=0, W1=None, N1=0, ramp=None, nB=30):
    if probe: diag = 2
    A = Asm()
    NS = 8
    VRING = NS * 8192
    MLB = 2 * NS * 8192
    CTL = MLB + 4096
    LDS = CTL + 64
    OUTBOX = 1 << 20
    OB_WG = 4 * 16384 + 4096
    FLAGS = 32 << 20
    SPIN = 1 << 22
    def vr(b, n=1): return f"v{b}" if n == 1 else f"v[{b}:{b+n-1}]"
    A(f"; @launch grid=(256,1,1) block=(320,1,1) lds={LDS}")
    A('.amdgcn_target "amdgcn-amd-amdhsa--gfx950"')
    A(".text"); A(f".globl {KNAME}"); A(".p2align 8"); A(f".type {KNAME},@function"); A.label(KNAME)
    A("s_cmp_ge_u32 s2, 256"); A("s_cbranch_scc1 L_end0")
    if diag: A("s_memrealtime s[80:81]")
    A("s_load_dwordx16 s[4:19], s[0:1], 0")
    A("s_load_dwordx2 s[20:21], s[0:1], 64")
    A("v_lshrrev_b32 v1, 6, v0")
    A("v_and_b32 v0, 63, v0")
    A("v_readfirstlane_b32 s3, v1")
    A("s_lshr_b32 s22, s2, 1")
    A("s_and_b32 s23, s2, 1")
    A(f"s_cmp_eq_u32 s23, {treehalf}")
    A("s_cselect_b32 s24, 65, 64")
    A(f"s_mov_b32 s25, {SPIN}")
    A(f"v_mov_b32 v1, {CTL}")
    A("s_cmp_lg_u32 s3, 0"); A("s_cbranch_scc1 L_consumer")

    A("s_setprio 3")
    D = (W - 2) // 8
    Wfin = W
    if W1 is None or not N1: W1 = W; N1 = 0
    cw = [W1]
    D1 = (W1 - 2) // 8
    A("v_lshrrev_b32 v2, 4, v0"); A("v_and_b32 v3, 15, v0")
    A("v_xor_b32 v4, v3, v2"); A("v_lshlrev_b32 v4, 4, v4")
    A("v_lshl_add_u32 v4, v2, 8, v4")
    for k in range(1, 4): A(f"v_xor_b32 v{4+k}, {64*k}, v4")
    A("v_lshlrev_b32 v17, 1, v2"); A("v_xor_b32 v17, v3, v17"); A("v_lshlrev_b32 v17, 4, v17")
    A("v_lshl_add_u32 v17, v2, 8, v17")
    A("v_xor_b32 v18, 128, v17")
    A("v_mov_b32 v9, 0")
    if trace: A("v_mov_b32 v30, 0"); A("v_mov_b32 v31, 0")
    A("v_lshl_add_u32 v10, v0, 2, v1")
    A("s_mov_b64 exec, 0xffff")
    A("ds_write_b32 v10, v9")
    A("s_mov_b64 exec, -1")
    A("s_lshl_b32 s26, s2, 19")
    A("s_lshl_b32 s27, s22, 13")
    A("s_mov_b32 s38, 0x8000000"); A("s_mov_b32 s39, 0x20000")
    A("s_mov_b32 s42, 0x8000000"); A("s_mov_b32 s43, 0x20000")
    A("s_mov_b32 s47, 0x20000"); A("s_mov_b32 s51, 0x20000")
    A(f"s_cmp_eq_u32 s23, {treehalf}")
    A("s_cselect_b32 s46, 0x100000, s38"); A("s_cselect_b32 s50, 0x100000, s38")
    A("s_cselect_b32 s27, s27, s26")
    A("s_cselect_b32 s28, 0, 8192")
    if ramp: A(f"s_mov_b32 s64, {4*64}"); A(f"s_mov_b32 s65, {ramp[0]}")
    A("s_mov_b32 s30, 0")
    A(f"s_mov_b32 s31, {VRING}")
    A(f"s_mov_b32 s32, {-D1}")
    A("s_waitcnt lgkmcnt(0)")
    A("s_cselect_b32 s44, s10, s6"); A("s_cselect_b32 s45, s11, s7")
    A("s_cselect_b32 s48, s12, s8"); A("s_cselect_b32 s49, s13, s9")
    A("s_mov_b32 s36, s6"); A("s_mov_b32 s37, s7")
    A("s_mov_b32 s40, s8"); A("s_mov_b32 s41, s9")
    issued = [0]
    def step(srd, soff, slot, isK, startup=False):
        W = cw[0]; qstar = (W - 2) % 8
        for q in range(8):
            if q == 0: A(f"s_mov_b32 m0, {slot}"); A(f"s_add_u32 s34, {soff}, 4096")
            if q == 4: A(f"s_add_u32 m0, {slot}, 4096"); A("s_nop 0")
            v = 4 + (q & 3) if isK else 17 + (q & 1)
            fl = ldflags if (isK or vflags is None) else vflags
            A(f"buffer_load_dwordx4 v{v}, {srd}, {soff if q < 4 else 's34'} offen offset:{(q&3)*1024} {fl} lds")
            issued[0] += 1
            if not (startup and issued[0] < W): A(f"s_waitcnt vmcnt({W-1})")
            if q == qstar:
                if startup and issued[0] < W: A("s_add_u32 s32, s32, 1")
                elif ramp:
                    r0, k, rmax, lagx = ramp
                    A("s_cmp_gt_i32 s32, 4")
                    A("s_cselect_b32 s66, s65, 0"); A(f"s_cselect_b32 s67, {k}, 0")
                    A("s_add_u32 s64, s64, s66"); A("s_add_u32 s65, s65, s67"); A(f"s_min_u32 s65, s65, {rmax}")
                    A(f"s_sub_u32 s67, s32, {lagx}"); A("s_lshl_b32 s67, s67, 6"); A("s_max_i32 s64, s64, s67")
                    A("s_lshr_b32 s66, s64, 6"); A("s_min_i32 s66, s66, s32")
                    A("v_mov_b32 v8, s66"); A("s_add_u32 s32, s32, 1"); A("ds_write_b32 v1, v8")
                else: A("v_mov_b32 v8, s32"); A("s_add_u32 s32, s32, 1"); A("ds_write_b32 v1, v8")
        A(f"s_add_u32 {slot}, {slot}, 8192")
        if isK: A(f"s_and_b32 {slot}, {slot}, 0xffff")
        else: A(f"s_and_b32 {slot}, {slot}, 0xffff"); A(f"s_bitset1_b32 {slot}, 16")
    step("s[44:47]", "s27", "s30", True, True)
    A("s_add_u32 s26, s26, s28")
    A("s_mov_b32 s29, s26")
    step("s[36:39]", "s26", "s30", True, True); A("s_add_u32 s26, s26, 8192")
    A("s_barrier")
    step("s[48:51]", "s27", "s31", False, True)
    if diag: A("s_memrealtime s[88:89]")
    A("s_mov_b32 s52, s20"); A("s_mov_b32 s53, s21"); A("s_mov_b32 s54, 0x4000000"); A("s_mov_b32 s55, 0x20000")
    A("s_lshl_b32 s35, s2, 7"); A(f"s_add_u32 s35, s35, {FLAGS}")
    A("v_and_b32 v11, 3, v0"); A("v_lshlrev_b32 v12, 2, v11"); A(f"v_add_u32 v11, {CTL+16}, v12")
    A("s_mov_b64 exec, 0xf")
    A("buffer_store_dword v9, v12, s[52:55], s35 offen sc1")
    A("s_mov_b64 exec, -1")
    A("s_mov_b32 s33, 0")
    A("s_mov_b32 s56, 1")
    def space(tag):
        A("s_cmp_ge_i32 s33, s57"); A(f"s_cbranch_scc1 L_space{tag}")
        A("v_mov_b32 v13, s57")
        A.label(f"L_spoll{tag}")
        A("ds_read_b32 v14, v11"); A("s_sub_u32 s25, s25, 1"); A("s_cbranch_scc1 L_end0"); A("s_waitcnt lgkmcnt(0)")
        A("v_cmp_lt_i32 vcc, v14, v13"); A(f"s_cbranch_vccz L_sok{tag}")
        if lsleep: A(f"s_sleep {lsleep}")
        A(f"s_branch L_spoll{tag}")
        A.label(f"L_sok{tag}")
        A("v_readlane_b32 s33, v14, 0"); A("v_readlane_b32 s58, v14, 1"); A("v_readlane_b32 s59, v14, 2"); A("v_readlane_b32 s60, v14, 3")
        A("s_min_i32 s33, s33, s58"); A("s_min_i32 s59, s59, s60"); A("s_min_i32 s33, s33, s59")
        A.label(f"L_space{tag}")
    if N1:
        A.label("L_lloop1")
        A(f"s_sub_u32 s57, s56, {NS-1}")
        space("c")
        A("s_add_u32 s56, s56, 1")
        if trace: A("s_memrealtime s[70:71]"); A("s_memtime s[72:73]")
        step("s[36:39]", "s26", "s30", True); A("s_add_u32 s26, s26, 8192")
        step("s[40:43]", "s29", "s31", False); A("s_add_u32 s29, s29, 8192")
        if trace:
            A("s_waitcnt lgkmcnt(0)"); A("s_sub_u32 s74, s56, 2"); A("s_mov_b32 m0, s74")
            A("v_writelane_b32 v30, s70, m0"); A("v_writelane_b32 v31, s72, m0")
        A(f"s_cmp_lt_u32 s56, {N1}"); A("s_cbranch_scc1 L_lloop1")
        A(f"s_sub_u32 s32, s32, {D - D1}")
        cw[0] = Wfin
    A.label("L_lloop")
    A(f"s_sub_u32 s57, s56, {NS-1}")
    space("a")
    A("s_add_u32 s56, s56, 1")
    if nomem: A(f"s_cmp_ge_u32 s56, {NS}")
    else: A("s_cmp_ge_u32 s56, s24")
    A("s_cbranch_scc1 L_lastv")
    if trace: A("s_memrealtime s[70:71]"); A("s_memtime s[72:73]")
    step("s[36:39]", "s26", "s30", True); A("s_add_u32 s26, s26, 8192")
    step("s[40:43]", "s29", "s31", False); A("s_add_u32 s29, s29, 8192")
    if trace:
        A("s_waitcnt lgkmcnt(0)"); A("s_sub_u32 s74, s56, 2"); A("s_mov_b32 m0, s74")
        A("v_writelane_b32 v30, s70, m0"); A("v_writelane_b32 v31, s72, m0")
    A("s_branch L_lloop")
    A.label("L_lastv")
    step("s[40:43]", "s29", "s31", False)
    if diag: A("s_memrealtime s[82:83]")
    A("s_lshr_b32 s34, s22, 1"); A("s_lshl_b32 s34, s34, 2"); A("v_mov_b32 v15, s34")
    A("s_and_b32 s35, s22, 1"); A("s_lshl_b32 s35, s35, 4"); A("s_lshl_b32 s57, 1, s35"); A("v_mov_b32 v13, s57")
    A("s_mov_b64 exec, 1")
    A("global_atomic_add v16, v15, v13, s[18:19] sc0 sc1")
    A("s_mov_b64 exec, -1")
    assert D >= 1
    if nomem: A("s_lshl_b32 s32, s24, 1"); A(f"s_sub_u32 s32, s32, {D}"); A("s_waitcnt vmcnt(1)")
    for r in range(D, 0, -1):
        A(f"s_waitcnt vmcnt({8*r+1})")
        if r == 1: A("s_add_u32 s32, s32, 1")
        A("v_mov_b32 v8, s32"); A("s_add_u32 s32, s32, 1"); A("ds_write_b32 v1, v8")
    A("s_add_u32 s32, s32, 1")
    A("s_waitcnt vmcnt(1)")
    A("v_mov_b32 v8, s32"); A("ds_write_b32 v1, v8")
    if diag: A("s_memrealtime s[84:85]")
    A("s_waitcnt vmcnt(0)")
    A("v_readfirstlane_b32 s61, v16"); A("s_lshr_b32 s61, s61, s35"); A("s_and_b32 s61, s61, 1")
    A("s_cbranch_scc1 L_lrecv")
    A("v_mov_b32 v8, 1"); A("ds_write_b32 v1, v8 offset:4")
    A("s_branch L_ldone")
    A.label("L_lrecv")
    A("s_xor_b32 s48, s2, 1")
    A("s_lshl_b32 s35, s48, 7"); A(f"s_add_u32 s35, s35, {FLAGS}")
    A.label("L_fpoll")
    A("buffer_load_dword v14, v12, s[52:55], s35 offen sc1")
    A("s_sub_u32 s25, s25, 64"); A("s_cbranch_scc1 L_end0")
    A("s_waitcnt vmcnt(0)")
    A("v_cmp_ne_u32 vcc, 1, v14"); A("s_cbranch_vccz L_fok")
    if fsleep: A(f"s_sleep {fsleep}")
    A("s_branch L_fpoll")
    A.label("L_fok")
    A("s_sub_u32 s57, s24, 4")
    if nomem: A("s_mov_b32 s57, s24")
    space("b")
    A("v_lshlrev_b32 v3, 4, v0")
    A(f"s_mul_i32 s35, s48, {OB_WG}"); A(f"s_add_u32 s35, s35, {OUTBOX}")
    A(f"s_mov_b32 m0, {MLB}"); A("s_add_u32 s34, s35, 65536")
    for q in range(4): A(f"buffer_load_dwordx4 v3, s[52:55], s34 offen offset:{q*1024} sc1 lds")
    A("s_and_b32 s30, s24, 7"); A("s_lshl_b32 s30, s30, 13")
    def pub(k): A(f"v_mov_b32 v8, {2+k}"); A("ds_write_b32 v1, v8 offset:4")
    for r in range(4):
        for hh in range(4):
            A(f"s_add_u32 m0, s30, {(hh & 1)*4096 + (VRING if hh >= 2 else 0)}")
            A("s_nop 0")
            for q in range(4): A(f"buffer_load_dwordx4 v3, s[52:55], s35 offen offset:{q*1024} sc1 lds")
            A("s_add_u32 s35, s35, 4096")
        A("s_add_u32 s30, s30, 8192"); A("s_and_b32 s30, s30, 0xffff")
        if r == 2: A("s_waitcnt vmcnt(32)"); pub(1)
    A("s_waitcnt vmcnt(32)"); pub(2)
    A("s_waitcnt vmcnt(16)"); pub(3)
    A("s_waitcnt vmcnt(0)"); pub(4)
    A.label("L_ldone")
    A("s_waitcnt lgkmcnt(0)")
    def spin(tag):
        who, base, reg, mult = probe
        A("s_memrealtime s[86:87]"); A("s_waitcnt lgkmcnt(0)")
        A(f"s_sub_u32 s90, s{reg}, s80"); A(f"s_mul_i32 s90, s90, {mult}"); A(f"s_add_u32 s90, s90, {base*100}")
        A("s_min_u32 s90, s90, 50000")
        A.label(f"L_spin{tag}")
        A("s_sleep 2"); A("s_memrealtime s[92:93]"); A("s_waitcnt lgkmcnt(0)")
        A("s_sub_u32 s92, s92, s80"); A("s_cmp_lt_u32 s92, s90"); A(f"s_cbranch_scc1 L_spin{tag}")
    if probe and probe[0] == 'L': spin('L')
    if diag == 1:
        A("s_memrealtime s[86:87]")
        A("s_getreg_b32 s80, hwreg(HW_REG_XCC_ID)"); A("s_mov_b32 s81, s61")
        A("s_waitcnt lgkmcnt(0)")
        for i in range(8): A(f"v_mov_b32 v{16+i}, s{80+i}")
        A("s_lshl_b32 s34, s2, 6"); A("v_mov_b32 v15, 0")
        A("s_mov_b64 exec, 1")
        A("buffer_store_dwordx4 v[16:19], v15, s[52:55], s34 offen offset:32")
        A("buffer_store_dwordx4 v[20:23], v15, s[52:55], s34 offen offset:48")
        if trace:
            A("s_mov_b64 exec, -1")
            A("v_lshlrev_b32 v15, 3, v0"); A("s_lshl_b32 s34, s2, 9"); A("s_add_u32 s34, s34, 131072")
            A("buffer_store_dwordx2 v[30:31], v15, s[52:55], s34 offen")
    A.label("L_end0")
    A("s_endpgm")

    A.label("L_consumer")
    vQ, vO, vSA, vSB, vK, vV, vT = 32, 64, 128, 144, 160, 192, 240
    vP = {'A': 224, 'B': 232}
    vM = (4, 6); vL = (5, 7); vAcc = (2, 3); vProgA, vProg, vTmp, vSum = 8, 9, 10, 11
    vKa, vVa = 12, 16
    sC, sTHR, sL, sNV, sNK, sEnd = 's26', 's27', 's28', 's29', 's30', 's32'
    MF = "v_mfma_f32_16x16x32_bf16"
    A("s_sub_u32 s3, s3, 1")
    A("v_and_b32 v24, 15, v0")
    A("v_lshrrev_b32 v25, 4, v0")
    A("v_lshlrev_b32 v26, 8, v24")
    A("v_lshl_add_u32 v27, v25, 4, v26")
    A("s_lshl_b32 s33, s22, 2"); A("s_add_u32 s33, s33, s3"); A("s_lshl_b32 s33, s33, 13")
    A("s_add_u32 s35, s33, 4096")
    A("s_mov_b32 s38, 0x400000"); A("s_mov_b32 s39, 0x20000")
    A("s_mov_b32 s42, 0x8000"); A("s_mov_b32 s43, 0x20000")
    A("v_lshlrev_b32 v28, 6, v24"); A("v_lshl_add_u32 v28, v25, 3, v28")
    A("s_lshr_b32 s34, s22, 3"); A("s_lshl_b32 s34, s34, 11")
    A("s_waitcnt lgkmcnt(0)")
    A("s_mov_b32 s36, s4"); A("s_mov_b32 s37, s5")
    for qb in range(2):
        for ks in range(4):
            A(f"buffer_load_dwordx4 {vr(vQ+4*(qb*4+ks),4)}, v27, s[36:39], {'s33' if qb == 0 else 's35'} offen offset:{64*ks} {qflags}")
    A("s_mov_b32 s40, s14"); A("s_mov_b32 s41, s15")
    for kb in range(2):
        for qb in range(2):
            A(f"buffer_load_dwordx2 {vr(vT+2*(2*kb+qb),2)}, v28, s[40:43], s34 offen offset:{1024*qb+32*kb}")
    A("s_barrier")
    A("v_xor_b32 v29, v25, v24")
    A(f"v_lshl_add_u32 v{vKa}, v29, 4, v26")
    for ks in range(1, 4): A(f"v_xor_b32 v{vKa+ks}, {64*ks}, v{vKa}")
    A("v_lshrrev_b32 v29, 2, v0")
    A("v_lshlrev_b32 v30, 8, v29")
    A("v_and_b32 v29, 7, v29"); A("v_lshl_add_u32 v30, v29, 5, v30")
    A("v_and_b32 v29, 3, v0"); A("v_lshl_add_u32 v30, v29, 3, v30")
    A(f"v_add_u32 v{vVa}, {VRING}, v30")
    for db in range(1, 8): A(f"v_xor_b32 v{vVa+db}, {32*db}, v{vVa}")
    A(f"s_lshl_b32 s34, s3, 2"); A(f"s_add_u32 s34, s34, {CTL+16}"); A(f"v_mov_b32 v{vProgA}, s34")
    A(f"v_mov_b32 v{vProg}, 0")
    A(f"s_mov_b32 {sC}, {hex(f2u(math.log2(math.e) / math.sqrt(128.0)))}")
    A(f"s_mov_b32 {sTHR}, {hex(f2u(thr))}")
    A(f"s_mov_b32 {sL}, 0")
    for qb in range(2):
        A(f"v_mov_b32 v{vM[qb]}, 0xff800000"); A(f"v_mov_b32 v{vL[qb]}, 0"); A(f"v_mov_b32 v{vAcc[qb]}, 0x7f800000")
    for i in range(64): A(f"v_mov_b32 v{vO+i}, 0")
    A(f"s_mov_b32 s35, {hex(f2u(-1e9 * math.sqrt(128.0)))}")
    A(f"s_cmp_eq_u32 s23, {treehalf}")
    A("s_cselect_b32 s35, s35, 0")
    A(f"s_lshl_b32 {sEnd}, s24, 1"); A(f"s_add_u32 {sEnd}, {sEnd}, 4")
    A("s_waitcnt vmcnt(0)")
    for g in range(4):
        for i in range(4):
            src = vT + 2*g + i//2
            if i % 2 == 0: A(f"v_lshlrev_b32 v{vSA+4*g+i}, 16, v{src}")
            else: A(f"v_and_b32 v{vSA+4*g+i}, 0xffff0000, v{src}")
    for i in range(16): A(f"v_fma_f32 v{vSA+i}, v{vSA+i}, -s35, s35")

    polls = []
    def wait_L(need):
        n = len(polls)
        body = [f"L_pent{n}:", f"s_cmp_eq_u32 {need}, {sEnd}", "s_cbranch_scc1 L_fin", f"L_poll{n}:", f"ds_read_b32 v{vTmp}, v1", "s_sub_u32 s25, s25, 1", "s_cbranch_scc1 L_end1", "s_waitcnt lgkmcnt(0)",
                f"v_readfirstlane_b32 {sL}, v{vTmp}", f"s_cmp_ge_i32 {sL}, {need}", f"s_cbranch_scc1 L_ok{n}"]
        if csleep: body.append(f"s_sleep {csleep}")
        body.append(f"s_branch L_poll{n}")
        polls.append(body)
        return [f"s_cmp_ge_i32 {sL}, {need}", f"s_cbranch_scc0 L_pent{n}", f"L_ok{n}:"]
    def Kf(ks, kb): return vK + 4*(2*ks + kb)
    def k_reads(slot): return [f"ds_read_b128 {vr(Kf(ks,kb),4)}, v{vKa+ks} offset:{slot*8192+kb*4096}" for ks in range(4) for kb in range(2)]
    def v_reads(slot): return [f"ds_read_b64_tr_b16 {vr(vV+4*db+2*u,2)}, v{vVa+db} offset:{slot*8192+u*4096}" for db in range(8) for u in range(2)]
    def qk(S, init):
        return [f"{MF} {vr(S+4*(2*kb+qb),4)}, {vr(Kf(ks,kb),4)}, {vr(vQ+4*(qb*4+ks),4)}, {'0' if (ks == 0 and not init) else vr(S+4*(2*kb+qb),4)}"
                for ks in range(4) for kb in range(2) for qb in range(2)]
    def pv(X):
        return [f"{MF} {vr(vO+4*(2*db+qb),4)}, {vr(vV+4*db,4)}, {vr(vP[X]+4*qb,4)}, {vr(vO+4*(2*db+qb),4)}" for db in range(8) for qb in range(2)]
    def softmax(S, X):
        def T(k, e): return vT + 2*(k % 4) + e
        def Sk(k, e): qb = k & 1; jj = k >> 1; return S + 4*(2*(jj >> 1) + qb) + 2*(jj & 1) + e
        def Pk(k): return vP[X] + 4*(k & 1) + (k >> 1)
        F = lambda k: [f"v_fma_f32 v{T(k,e)}, v{Sk(k,e)}, {sC}, -v{vM[k&1]}" for e in range(2)]
        E = lambda k: [f"v_exp_f32 v{T(k,e)}, v{T(k,e)}" for e in range(2)]
        def AC(k):
            a = vAcc[k & 1]
            c = f"v_cvt_pk_bf16_f32 v{Pk(k)}, v{T(k,0)}, v{T(k,1)}"
            if k < 2: return [f"v_add_f32 v{a}, v{T(k,0)}, v{T(k,1)}", c]
            return [f"v_add_f32 v{a}, v{a}, v{T(k,0)}", c, f"v_add_f32 v{a}, v{a}, v{T(k,1)}"]
        out = F(0) + F(1) + E(0)
        for k in range(8):
            if k + 2 < 8: out += F(k+2)
            if k + 1 < 8: out += E(k+1)
            out += AC(k)
        return out

    A(f"s_mov_b32 {sNK}, 1")
    A(wait_L(sNK)); A(k_reads(0))
    A("s_waitcnt lgkmcnt(0)")
    A(qk(vSA, True))
    A(f"s_mov_b32 {sNK}, 2")
    A(wait_L(sNK)); A(k_reads(1))
    A(f"s_mov_b32 {sNV}, 4")
    A(wait_L(sNV))
    A("s_waitcnt lgkmcnt(0)")
    if diag: A("s_memrealtime s[82:83]"); A("s_memtime s[88:89]"); A("s_waitcnt lgkmcnt(0)")
    stubs = []
    def flt(L):
        ds = [d for d in drop.split(',') if d]
        return [x for x in L if not any(x.startswith(d) for d in ds)]
    def spread(stream, n):
        tot = sum(cost(x) for x in stream); out = [[] for _ in range(n)]; acc = 0
        for x in stream:
            g = min(n - 1, int((acc + cost(x) / 2.0) * n / tot))
            out[g].append(x); acc += cost(x)
        return out
    A(".p2align 3")
    for i in range(NS):
        X, Y = ('A', 'B') if i % 2 == 0 else ('B', 'A')
        Scur, Snext = (vSA, vSB) if X == 'A' else (vSB, vSA)
        A.label(f"L_body{i}")
        B = []
        q = qk(Snext, False); vrd = v_reads(i); kr = k_reads((i + 2) % NS); p = pv(X)
        st = spread(softmax(Scur, X)[nB:] + [f"v_add_f32 v{vSum}, v{vAcc[0]}, v{vAcc[1]}", f"v_cmp_nge_f32 vcc, {sTHR}, v{vSum}"], 14)
        for g in range(14):
            B.append(q[g])
            nv = 2 if g < 2 else 1
            B += vrd[:nv]; vrd = vrd[nv:]
            B += st[g]
        assert not vrd
        B.append(q[14]); B += kr[0:2]
        B.append(q[15]); B.append("s_waitcnt lgkmcnt(6)"); B += kr[2:3]
        if not drop: B.append(f"s_cbranch_vccnz L_stub{i}")
        B.append(f"L_cont{i}:")
        stubs.append([f"L_stub{i}:", f"s_call_b64 s[62:63], L_slow{X}", f"s_branch L_cont{i}"])
        st = spread(softmax(Snext, Y)[:nB], 13)
        w = wait_L(sNV)
        B.append(p[0]); B += kr[3:4]; B.append(f"v_add_f32 v{vL[0]}, v{vL[0]}, v{vAcc[0]}")
        B.append(p[1]); B += kr[4:5]; B.append(f"v_add_f32 v{vL[1]}, v{vL[1]}, v{vAcc[1]}")
        B.append(p[2]); B += kr[5:6]; B.append(f"v_add_u32 v{vProg}, 1, v{vProg}")
        for g in range(3, 16):
            B.append(p[g])
            if g == 3: B += kr[6:7]
            if g == 4: B += kr[7:8]
            if g == 5: B += ["s_waitcnt lgkmcnt(8)", f"ds_write_b32 v{vProgA}, v{vProg}"]
            if g == 12: B.append(f"s_add_u32 {sNV}, {sNV}, 2")
            if g == 13: B.append(w[0])
            if g == 14: B.append("s_waitcnt lgkmcnt(0)")
            B += st[g - 3]
        if i < NS - 1: B += w[1:]
        else:
            n = len(polls) - 1
            B += ["s_cbranch_scc1 L_body0", f"s_branch L_pent{n}"]
            polls[n] = [x.replace(f"L_ok{n}", "L_body0") for x in polls[n]]
        A(flt(B))
    def xreduce(op, regs, tmps):
        for sw in ("v_permlane16_swap_b32", "v_permlane32_swap_b32"):
            for r, t in zip(regs, tmps): A(f"v_mov_b32 v{t}, v{r}")
            A("s_nop 1")
            for r, t in zip(regs, tmps): A(f"{sw} v{t}, v{r}")
            A("s_nop 1")
            for r, t in zip(regs, tmps): A(f"{op} v{r}, v{r}, v{t}")
    A.label("L_fin")
    if diag: A("s_memrealtime s[84:85]"); A("s_memtime s[90:91]")
    xreduce("v_add_f32", vL, (vT, vT+1))
    A("s_mov_b32 s44, s20"); A("s_mov_b32 s45, s21")
    A("s_mov_b32 s46, 0x4000000"); A("s_mov_b32 s47, 0x20000")
    A("v_lshlrev_b32 v12, 4, v0")
    A("s_add_u32 s35, s3, 3")
    A.label("L_role")
    A(f"ds_read_b32 v{vTmp}, v1 offset:4"); A("s_sub_u32 s25, s25, 1"); A("s_cbranch_scc1 L_end1"); A("s_waitcnt lgkmcnt(0)")
    A(f"v_readfirstlane_b32 s34, v{vTmp}")
    A("s_cmp_ge_u32 s34, s35"); A("s_cbranch_scc1 L_recv")
    A("s_cmp_eq_u32 s34, 1"); A("s_cbranch_scc0 L_role")
    A(f"s_mul_i32 s35, s2, {OB_WG}"); A(f"s_add_u32 s35, s35, {OUTBOX}")
    A("s_lshl_b32 s34, s3, 10"); A("s_add_u32 s34, s34, s35"); A("s_add_u32 s34, s34, 65536")
    A(f"buffer_store_dwordx4 v[4:7], v12, s[44:47], s34 offen sc1")
    A("s_lshl_b32 s34, s3, 14"); A("s_add_u32 s35, s35, s34")
    for i in range(16):
        if i % 4 == 0 and i: A(f"s_add_u32 s35, s35, 4096")
        A(f"buffer_store_dwordx4 {vr(vO+4*i,4)}, v12, s[44:47], s35 offen offset:{(i%4)*1024} sc1")
    A("s_lshl_b32 s35, s2, 7"); A("s_lshl_b32 s34, s3, 2"); A("s_add_u32 s35, s35, s34"); A(f"s_add_u32 s35, s35, {FLAGS}")
    A("v_mov_b32 v14, 1"); A("v_mov_b32 v15, 0")
    A("s_waitcnt vmcnt(0)")
    A("s_mov_b64 exec, 1")
    A("buffer_store_dword v14, v15, s[44:47], s35 offen sc1")
    A("s_mov_b64 exec, -1")
    A("s_branch L_done")
    A.label("L_recv")
    A("s_add_u32 s34, s24, s3"); A("s_and_b32 s34, s34, 7"); A("s_lshl_b32 s34, s34, 13")
    A("s_lshl_b32 s35, s3, 10"); A(f"s_add_u32 s35, s35, {MLB}")
    A("v_add_u32 v13, s35, v12")
    A("ds_read_b128 v[16:19], v13")
    A("v_add_u32 v14, s34, v12"); A(f"v_add_u32 v15, {VRING}, v14")
    fa = (20, 21); fb = (22, 23)
    for i in range(16):
        A(f"ds_read_b128 {vr(vK+4*i,4)}, v{14 if i < 8 else 15} offset:{(i%8)*1024}")
        if i == 7:
            A("s_waitcnt lgkmcnt(8)")
            for qb in range(2):
                A(f"v_max_f32 v{vT+qb}, v{vM[qb]}, v{16+2*qb}")
                A(f"v_sub_f32 v{fa[qb]}, v{vM[qb]}, v{vT+qb}"); A(f"v_sub_f32 v{fb[qb]}, v{16+2*qb}, v{vT+qb}")
                A(f"v_exp_f32 v{fa[qb]}, v{fa[qb]}"); A(f"v_exp_f32 v{fb[qb]}, v{fb[qb]}")
    for qb in range(2):
        A(f"v_mul_f32 v{vT+qb}, v{vL[qb]}, v{fa[qb]}"); A(f"v_fma_f32 v{vT+qb}, v{17+2*qb}, v{fb[qb]}, v{vT+qb}")
        A(f"v_rcp_f32 v{vT+qb}, v{vT+qb}")
    A("v_lshrrev_b32 v28, 1, v25"); A("v_xor_b32 v28, v28, v24"); A("v_lshl_add_u32 v28, v28, 4, v26")
    for qb in range(2):
        A(f"v_mul_f32 v{fa[qb]}, v{fa[qb]}, v{vT+qb}"); A(f"v_mul_f32 v{fb[qb]}, v{fb[qb]}, v{vT+qb}")
    A("v_and_b32 v29, 1, v25"); A("v_lshl_add_u32 v28, v29, 3, v28"); A("v_add_u32 v28, s34, v28")
    A("v_xor_b32 v29, v24, v25"); A("v_lshlrev_b32 v29, 4, v29"); A("v_lshl_add_u32 v29, v25, 8, v29"); A("v_add_u32 v29, s34, v29")
    for i in range(64): A(f"v_mul_f32 v{vO+i}, v{vO+i}, v{fa[(i//4)&1]}")
    A("s_waitcnt lgkmcnt(0)")
    for q in range(16):
        db, qb = q >> 1, q & 1
        for e in range(4): A(f"v_fma_f32 v{vO+4*q+e}, v{vK+4*q+e}, v{fb[qb]}, v{vO+4*q+e}")
        A(f"v_cvt_pk_bf16_f32 v{vT+2*(q%4)}, v{vO+4*q}, v{vO+4*q+1}")
        A(f"v_cvt_pk_bf16_f32 v{vT+2*(q%4)+1}, v{vO+4*q+2}, v{vO+4*q+3}")
        if qb == 0: A(f"v_xor_b32 v30, {32*db}, v28")
        A(f"ds_write_b64 v30, {vr(vT+2*(q%4),2)} offset:{qb*4096}")
    A("s_mov_b32 s40, s16"); A("s_mov_b32 s41, s17"); A("s_mov_b32 s42, 0x400000"); A("s_mov_b32 s43, 0x20000")
    A("s_waitcnt lgkmcnt(0)")
    for k in range(8):
        A(f"v_xor_b32 v30, {((4*k)&15)*16}, v29")
        A(f"ds_read_b128 {vr(vK+4*k,4)}, v30 offset:{k*1024}")
    for k in range(8):
        if k == 4: A("s_add_u32 s33, s33, 4096")
        A(f"s_waitcnt lgkmcnt({7-k})")
        A(f"buffer_store_dwordx4 {vr(vK+4*k,4)}, v12, s[40:43], s33 offen offset:{(k%4)*1024} {stflags}")
    A.label("L_done")
    if probe and probe[0] == 'C':
        A("s_waitcnt vmcnt(0)"); spin('C')
    if diag == 1:
        A("s_waitcnt vmcnt(0)")
        A("s_memrealtime s[86:87]")
        A("s_cmp_lg_u32 s3, 0"); A("s_cbranch_scc1 L_end1")
        A("s_waitcnt lgkmcnt(0)")
        A("s_sub_u32 s90, s90, s88")
        for i in range(8): A(f"v_mov_b32 v{16+i}, s{80+i}")
        A("v_mov_b32 v24, s90")
        A("s_lshl_b32 s34, s2, 6"); A("v_mov_b32 v15, 0")
        A("s_mov_b64 exec, 1")
        A("s_lshl_b32 s35, s2, 4"); A("s_add_u32 s35, s35, 65536")
        A("buffer_store_dword v24, v15, s[44:47], s35 offen")
        A("buffer_store_dwordx4 v[16:19], v15, s[44:47], s34 offen")
        A("buffer_store_dwordx4 v[20:23], v15, s[44:47], s34 offen offset:16")
    A.label("L_end1")
    A("s_endpgm")
    for p in polls: A(p)
    for p in stubs: A(p)
    def slow(X, S):
        A.label(f"L_slow{X}")
        t = (vT, vT + 1); u = (vT + 2, vT + 3)
        for qb in range(2):
            e = [S + 4*(2*kb + qb) + r for kb in range(2) for r in range(4)]
            A(f"v_max3_f32 v{t[qb]}, v{e[0]}, v{e[1]}, v{e[2]}")
            A(f"v_max3_f32 v{t[qb]}, v{t[qb]}, v{e[3]}, v{e[4]}")
            A(f"v_max3_f32 v{t[qb]}, v{t[qb]}, v{e[5]}, v{e[6]}")
            A(f"v_max_f32 v{t[qb]}, v{t[qb]}, v{e[7]}")
        xreduce("v_max_f32", t, u)
        for qb in range(2):
            A(f"v_mul_f32 v{t[qb]}, {sC}, v{t[qb]}")
            A(f"v_max_f32 v{t[qb]}, v{t[qb]}, v{vM[qb]}")
            A(f"v_sub_f32 v{u[qb]}, v{vM[qb]}, v{t[qb]}")
            A(f"v_exp_f32 v{u[qb]}, v{u[qb]}")
            A(f"v_mov_b32 v{vM[qb]}, v{t[qb]}")
        for qb in range(2): A(f"v_mul_f32 v{vL[qb]}, v{vL[qb]}, v{u[qb]}")
        for i in range(64): A(f"v_mul_f32 v{vO+i}, v{vO+i}, v{u[(i//4)&1]}")
        A(softmax(S, X))
        A("s_setpc_b64 s[62:63]")
    slow('A', vSA)
    slow('B', vSB)
    A('.section .rodata,"a"'); A(".p2align 6")
    A(f".amdhsa_kernel {KNAME}")
    A(".amdhsa_next_free_vgpr 248"); A(".amdhsa_next_free_sgpr 96"); A(".amdhsa_accum_offset 248")
    A(".amdhsa_group_segment_fixed_size 0"); A(".amdhsa_kernarg_size 72"); A(".amdhsa_user_sgpr_count 2")
    A(".amdhsa_user_sgpr_kernarg_segment_ptr 1"); A(".amdhsa_system_sgpr_workgroup_id_x 1")
    A(".end_amdhsa_kernel")
    return A.text()

if __name__ == '__main__':
    kw = eval("dict(%s)" % (sys.argv[2] if len(sys.argv) > 2 else ""))
    open(sys.argv[1], 'w').write(gen(**kw))
```

```python
import sys, math, struct
KNAME = "standalone__tree_speculative_verify_tree_attention_over_candidate_token_tree__sampling_kernel"
def f2u(x): return struct.unpack('<I', struct.pack('<f', x))[0]

class Asm:
    def __init__(self): self.L = []
    def __call__(self, s):
        if isinstance(s, list):
            for x in s: self(x)
        else: self.L.append(s)
    def label(self, s): self.L.append(s + ":")
    def text(self): return "\n".join(("    " + l if not l.endswith(":") and not l.startswith(";") and not l.startswith(".") else l) for l in self.L) + "\n"

def cost(x):
    if isinstance(x, list): return sum(cost(y) for y in x)
    if x.endswith(':'): return 0
    return 2 if x.startswith('v_exp') else 1

def interleave(mf, fill, pre=0.0):
    out = []
    tot = sum(cost(f) for f in fill)
    n = len(mf); idx = 0; acc = 0
    for i, m in enumerate(mf):
        out.append(m)
        tgt = tot * (i + 1) / n
        while idx < len(fill) and acc + cost(fill[idx]) / 2.0 <= tgt:
            out.append(fill[idx]); acc += cost(fill[idx]); idx += 1
    out += fill[idx:]
    return out

def merge(a, b, ra=1, rb=1):
    out = []; i = j = 0
    while i < len(a) or j < len(b):
        for _ in range(ra):
            if i < len(a): out.append(a[i]); i += 1
        for _ in range(rb):
            if j < len(b): out.append(b[j]); j += 1
    return out

def gen(Ws=(17, 20, 24, 32), wdef=1, w1=3, N1=2, w2=3, S2=58, Ts=61, ckpt=(), rthr=(64, 176, 232), rsel=(0, 1, 2, 3),
        ldflags='nt', qflags='', stflags='sc1', xst='sc1', xld='sc1', diag=0, thr=1024.0,
        lsleep=1, csleep=1, fsleep=1, hsleep=4, drop='', probe=None, trace=0, ramp=(44, 1, 66, 9), nB=30, pair=8, warm=0, st2=0, smode='store', sspread=31, barpos=2, qlate=0, touch=0, vw=None, sched=None, rot=0, st3=0):
    if probe: diag = 2
    treehalf = 0
    A = Asm()
    NS = 8
    VRING = NS * 8192
    MLB = 2 * NS * 8192
    CTL = MLB + 4096
    LDS = CTL + 64
    OUTBOX = 1 << 20
    OB_WG = 4 * 8192 + 4096
    FLAGS = 32 << 20
    SPIN = 1 << 22
    def vr(b, n=1): return f"v{b}" if n == 1 else f"v[{b}:{b+n-1}]"
    A(f"; @launch grid=(256,1,1) block=(384,1,1) lds={LDS}")
    A('.amdgcn_target "amdgcn-amd-amdhsa--gfx950"')
    A(".text"); A(f".globl {KNAME}"); A(".p2align 8"); A(f".type {KNAME},@function"); A.label(KNAME)
    A("s_cmp_ge_u32 s2, 256"); A("s_cbranch_scc1 L_end0")
    if diag: A("s_memrealtime s[80:81]")
    A("s_load_dwordx16 s[4:19], s[0:1], 0")
    A("s_load_dwordx2 s[20:21], s[0:1], 64")
    A("v_lshrrev_b32 v1, 6, v0")
    A("v_and_b32 v0, 63, v0")
    A("v_readfirstlane_b32 s3, v1")
    A("s_mov_b32 s75, s2")
    if pair == 8:
        A("s_and_b32 s22, s2, 7"); A("s_lshl_b32 s22, s22, 1"); A("s_bfe_u32 s23, s2, 0x10003"); A("s_or_b32 s22, s22, s23")
        A("s_and_b32 s2, s2, 0xf0"); A("s_or_b32 s2, s2, s22")
    A("s_lshr_b32 s22, s2, 1")
    A("s_and_b32 s23, s2, 1")
    A(f"s_cmp_eq_u32 s23, {treehalf}")
    A(f"s_cselect_b32 s24, {129-Ts}, {Ts}")
    A(f"s_mov_b32 s25, {SPIN}")
    A(f"v_mov_b32 v1, {CTL}")
    A("s_cmp_lg_u32 s3, 0"); A("s_cbranch_scc1 L_notloader")

    A("s_setprio 3")
    A("v_lshrrev_b32 v2, 4, v0"); A("v_and_b32 v3, 15, v0")
    A("v_xor_b32 v4, v3, v2"); A("v_lshlrev_b32 v4, 4, v4")
    A("v_lshl_add_u32 v4, v2, 8, v4")
    for k in range(1, 4): A(f"v_xor_b32 v{4+k}, {64*k}, v4")
    A("v_lshlrev_b32 v17, 1, v2"); A("v_xor_b32 v17, v3, v17"); A("v_lshlrev_b32 v17, 4, v17")
    A("v_lshl_add_u32 v17, v2, 8, v17")
    A("v_xor_b32 v18, 128, v17")
    A("v_mov_b32 v9, 0")
    if trace: A("v_mov_b32 v30, 0"); A("v_mov_b32 v31, 0")
    A("v_lshl_add_u32 v10, v0, 2, v1")
    A("s_mov_b64 exec, 0xffff")
    A("ds_write_b32 v10, v9")
    A("s_mov_b64 exec, -1")
    assert treehalf == 0
    A("s_lshl_b32 s26, s22, 20"); A(f"s_mul_i32 s27, s23, {(128-Ts)*8192}"); A("s_add_u32 s26, s26, s27")
    A("s_lshl_b32 s27, s22, 13")
    A("s_mov_b32 s38, 0x8000000"); A("s_mov_b32 s39, 0x20000")
    A("s_mov_b32 s42, 0x8000000"); A("s_mov_b32 s43, 0x20000")
    A("s_mov_b32 s47, 0x20000"); A("s_mov_b32 s51, 0x20000")
    A(f"s_cmp_eq_u32 s23, {treehalf}")
    A("s_cselect_b32 s46, 0x100000, s38"); A("s_cselect_b32 s50, 0x100000, s38")
    A("s_cselect_b32 s27, s27, s26")
    A("s_cselect_b32 s28, 0, 8192")
    if ramp: A(f"s_mov_b32 s64, {4*64}"); A(f"s_mov_b32 s65, {ramp[0]}")
    A("s_mov_b32 s30, 0")
    A(f"s_mov_b32 s31, {VRING}")
    A("s_mov_b32 s32, 0")
    A("s_waitcnt lgkmcnt(0)")
    if st2 == 1: A("s_memrealtime s[90:91]")
    A("s_cselect_b32 s44, s10, s6"); A("s_cselect_b32 s45, s11, s7")
    A("s_cselect_b32 s48, s12, s8"); A("s_cselect_b32 s49, s13, s9")
    A("s_mov_b32 s36, s6"); A("s_mov_b32 s37, s7")
    A("s_mov_b32 s40, s8"); A("s_mov_b32 s41, s9")
    issued = [0]
    def publish(D):
        A(f"s_sub_u32 s68, s32, {D}")
        if ramp:
            r0, k, rmax, lagx = ramp
            A("s_cmp_gt_i32 s68, 4")
            A("s_cselect_b32 s66, s65, 0"); A(f"s_cselect_b32 s67, {k}, 0")
            A("s_add_u32 s64, s64, s66"); A("s_add_u32 s65, s65, s67"); A(f"s_min_u32 s65, s65, {rmax}")
            A(f"s_sub_u32 s67, s32, {lagx+2}"); A("s_lshl_b32 s67, s67, 6"); A("s_max_i32 s64, s64, s67")
            A("s_lshr_b32 s66, s64, 6"); A("s_min_i32 s68, s66, s68")
        A("v_mov_b32 v8, s68"); A("ds_write_b32 v1, v8")
    def step(srd, soff, slot, isK, W, startup=False):
        qstar = (W - 2) % 8
        for q in range(8):
            if q == 0: A(f"s_mov_b32 m0, {slot}"); A(f"s_add_u32 s34, {soff}, 4096")
            if q == 4: A(f"s_add_u32 m0, {slot}, 4096"); A("s_nop 0")
            v = 4 + (q & 3) if isK else 17 + (q & 1)
            A(f"buffer_load_dwordx4 v{v}, {srd}, {soff if q < 4 else 's34'} offen offset:{(q&3)*1024} {ldflags} lds")
            issued[0] += 1
            if not (startup and issued[0] < W):
                A(f"s_waitcnt vmcnt({W-1})")
                if q == qstar: publish((W - 2) // 8)
        A("s_add_u32 s32, s32, 1")
        A(f"s_add_u32 {slot}, {slot}, 8192")
        if isK: A(f"s_and_b32 {slot}, {slot}, 0xffff")
        else: A(f"s_and_b32 {slot}, {slot}, 0xffff"); A(f"s_bitset1_b32 {slot}, 16")
    W1 = Ws[w1]; W2 = Ws[w2]
    step("s[44:47]", "s27", "s30", True, W1, True)
    if st2 == 2: A("s_memrealtime s[90:91]")
    A("s_add_u32 s26, s26, s28")
    A("s_mov_b32 s29, s26")
    step("s[36:39]", "s26", "s30", True, W1, True); A("s_add_u32 s26, s26, 8192")
    if st2 == 2: A("s_memrealtime s[92:93]")
    if barpos == 2: A("s_barrier")
    step("s[48:51]", "s27", "s31", False, W1, True)
    if barpos == 3: A("s_barrier")
    if st2 == 1: A("s_memrealtime s[92:93]"); A("s_waitcnt vmcnt(16)")
    elif vw is not None: A(f"s_waitcnt vmcnt({vw})")
    if diag: A("s_memrealtime s[88:89]")
    A("s_mov_b32 s52, s20"); A("s_mov_b32 s53, s21"); A("s_mov_b32 s54, 0x4000000"); A("s_mov_b32 s55, 0x20000")
    A("v_and_b32 v11, 3, v0"); A("v_lshlrev_b32 v12, 2, v11"); A(f"v_add_u32 v11, {CTL+16}, v12")
    A("s_mov_b32 s33, 0")
    A("s_mov_b32 s56, 1")
    A("s_mov_b32 s69, 0")
    def space(tag, endl):
        A("s_cmp_ge_i32 s33, s57"); A(f"s_cbranch_scc1 L_space{tag}")
        A("v_mov_b32 v13, s57")
        A.label(f"L_spoll{tag}")
        A("ds_read_b32 v14, v11"); A("s_sub_u32 s25, s25, 1"); A(f"s_cbranch_scc1 {endl}"); A("s_waitcnt lgkmcnt(0)")
        A("v_cmp_lt_i32 vcc, v14, v13"); A(f"s_cbranch_vccz L_sok{tag}")
        if lsleep: A(f"s_sleep {lsleep}")
        A(f"s_branch L_spoll{tag}")
        A.label(f"L_sok{tag}")
        A("v_readlane_b32 s33, v14, 0"); A("v_readlane_b32 s58, v14, 1"); A("v_readlane_b32 s59, v14, 2"); A("v_readlane_b32 s60, v14, 3")
        A("s_min_i32 s33, s33, s58"); A("s_min_i32 s59, s59, s60"); A("s_min_i32 s33, s33, s59")
        A.label(f"L_space{tag}")
    A.label("L_top")
    A(f"s_sub_u32 s57, s56, {NS-1}")
    space("a", "L_end0")
    A(f"s_add_u32 s76, s69, {wdef}")
    if sched:
        for (uth, k) in sorted(sched, reverse=True):
            A(f"s_cmp_lt_u32 s56, {uth}"); A(f"s_cselect_b32 s76, {k}, s76")
    A(f"s_cmp_lt_u32 s56, {N1}"); A(f"s_cselect_b32 s76, {w1}, s76")
    A(f"s_cmp_ge_u32 s56, {S2}"); A(f"s_cselect_b32 s76, {w2}, s76")
    A("s_add_u32 s56, s56, 1")
    A("s_cmp_ge_u32 s56, s24"); A("s_cbranch_scc1 L_lastv")
    if ckpt: A("ds_read_b32 v19, v1 offset:8")
    if trace: A("s_memrealtime s[70:71]"); A("s_memtime s[72:73]")
    order = [wdef] + [k for k in range(len(Ws)) if k != wdef]
    for n, k in enumerate(order):
        A.label(f"L_unit{k}")
        if n < len(order) - 1:
            A(f"s_cmp_lg_u32 s76, {k}"); A(f"s_cbranch_scc1 L_unit{order[n+1]}")
        step("s[36:39]", "s26", "s30", True, Ws[k]); A("s_add_u32 s26, s26, 8192")
        if ckpt: A("s_waitcnt lgkmcnt(0)"); A("v_readfirstlane_b32 s69, v19")
        step("s[40:43]", "s29", "s31", False, Ws[k]); A("s_add_u32 s29, s29, 8192")
        if trace:
            A("s_waitcnt lgkmcnt(0)"); A("s_sub_u32 s74, s56, 2"); A("s_min_u32 m0, s74, 63")
            A("v_writelane_b32 v30, s70, m0"); A("v_writelane_b32 v31, s72, m0")
        A("s_branch L_top")
    A.label("L_lastv")
    step("s[40:43]", "s29", "s31", False, W2)
    if diag: A("s_memrealtime s[82:83]")
    D = (W2 - 2) // 8
    assert D >= 1
    for r in range(D, 0, -1):
        A(f"s_waitcnt vmcnt({8*r})")
        A(f"s_sub_u32 s68, s32, {r if r > 1 else 0}")
        A("v_mov_b32 v8, s68"); A("ds_write_b32 v1, v8")
    A("s_add_u32 s68, s32, 2")
    A("v_mov_b32 v8, s68")
    A("s_waitcnt vmcnt(0)")
    A("ds_write_b32 v1, v8")
    if diag: A("s_memrealtime s[84:85]")
    A("s_xor_b32 s61, s23, 1")
    A.label("L_ldone")
    A("s_waitcnt lgkmcnt(0)")
    def spin(tag):
        who, base, reg, mult = probe
        A("s_memrealtime s[86:87]"); A("s_waitcnt lgkmcnt(0)")
        A(f"s_sub_u32 s90, s{reg}, s80"); A(f"s_mul_i32 s90, s90, {mult}"); A(f"s_add_u32 s90, s90, {base*100}")
        A("s_min_u32 s90, s90, 50000")
        A.label(f"L_spin{tag}")
        A("s_sleep 2"); A("s_memrealtime s[92:93]"); A("s_waitcnt lgkmcnt(0)")
        A("s_sub_u32 s92, s92, s80"); A("s_cmp_lt_u32 s92, s90"); A(f"s_cbranch_scc1 L_spin{tag}")
    if probe and probe[0] == 'L': spin('L')
    if diag == 1:
        A("s_memrealtime s[86:87]")
        if st2:
            A("s_waitcnt lgkmcnt(0)")
            A("s_sub_u32 s90, s90, s80"); A("s_sub_u32 s92, s92, s80"); A("s_sub_u32 s88, s88, s80")
            A("s_lshl_b32 s92, s92, 16"); A("s_or_b32 s82, s90, s92"); A("s_mov_b32 s83, s88")
        A("s_getreg_b32 s80, hwreg(HW_REG_XCC_ID)"); A("s_mov_b32 s81, s61")
        A("s_waitcnt lgkmcnt(0)")
        for i in range(8): A(f"v_mov_b32 v{16+i}, s{80+i}")
        A("s_lshl_b32 s34, s2, 6"); A("v_mov_b32 v15, 0")
        A("s_mov_b64 exec, 1")
        A("buffer_store_dwordx4 v[16:19], v15, s[52:55], s34 offen offset:32")
        A("buffer_store_dwordx2 v[20:21], v15, s[52:55], s34 offen offset:48")
        if trace:
            A("s_mov_b64 exec, -1")
            A("v_lshlrev_b32 v15, 3, v0"); A("s_lshl_b32 s34, s2, 9"); A("s_add_u32 s34, s34, 131072")
            A("buffer_store_dwordx2 v[30:31], v15, s[52:55], s34 offen")
    A.label("L_end0")
    A("s_endpgm")

    A.label("L_notloader")
    A("s_cmp_lg_u32 s3, 1"); A("s_cbranch_scc1 L_consumer")
    if warm & 1:
        A("s_getpc_b64 s[38:39]")
        A.label("L_pc0")
        A("s_add_u32 s38, s38, L_consumer-L_pc0"); A("s_addc_u32 s39, s39, 0")
        A("v_lshlrev_b32 v20, 7, v0"); A("v_add_u32 v21, 8192, v20"); A("v_min_u32 v21, L_codeend-L_consumer-4, v21")
        A("global_load_dword v22, v20, s[38:39]"); A("global_load_dword v23, v21, s[38:39]")
    A("v_and_b32 v11, 3, v0"); A("v_lshlrev_b32 v12, 2, v11"); A(f"v_add_u32 v11, {CTL+16}, v12")
    A("v_mov_b32 v9, 0"); A("v_mov_b32 v2, 1")
    A("s_lshl_b32 s35, s22, 7"); A(f"s_add_u32 s35, s35, {FLAGS}")
    if smode == 'atomic':
        A("s_lshr_b32 s34, s22, 5"); A("s_lshl_b32 s34, s34, 2"); A("v_mov_b32 v15, s34")
        A("s_and_b32 s36, s22, 31"); A("s_lshl_b32 s36, 1, s36"); A("v_mov_b32 v16, s36")
    else:
        A("s_lshl_b32 s34, s22, 1"); A("v_mov_b32 v15, s34"); A("s_mov_b32 s36, 1")
    A("s_mov_b32 s54, 0x4000000"); A("s_mov_b32 s55, 0x20000")
    A("s_mov_b32 s33, 0")
    A("s_waitcnt lgkmcnt(0)")
    A("s_mov_b32 s52, s20"); A("s_mov_b32 s53, s21")
    if touch:
        tl = []
        if touch & 1: tl += [(16, ('s_lshl_b32 s40, s22, 15',)), (20, ('s_mov_b32 s40, s35',)), (20, (f's_mul_i32 s40, s22, {OB_WG}', f's_add_u32 s40, s40, {OUTBOX}')),
                             (20, (f's_mul_i32 s40, s22, {OB_WG}', f's_add_u32 s40, s40, {OUTBOX+OB_WG-4}')), (18, ('s_mov_b32 s40, 0',))]
        if touch & 2: tl += [(6, ('s_lshl_b32 s40, s22, 20',)), (8, ('s_lshl_b32 s40, s22, 20',)), (10, ('s_lshl_b32 s40, s22, 13',)), (12, ('s_lshl_b32 s40, s22, 13',)),
                             (4, ('s_lshl_b32 s40, s22, 15',)), (14, ('s_mov_b32 s40, 0',))]
        A("v_mov_b32 v24, s18"); A("v_mov_b32 v25, s19")
        for n, (b, ins) in enumerate(tl):
            A(list(ins)); A(f"s_add_u32 s40, s40, s{b}"); A(f"s_addc_u32 s41, s{b+1}, 0")
            A(f"v_writelane_b32 v24, s40, {n}"); A(f"v_writelane_b32 v25, s41, {n}")
        A(f"s_mov_b64 exec, {(1 << len(tl)) - 1}")
        A("global_load_dword v26, v[24:25], off sc1")
        A("s_mov_b64 exec, -1")
    A("s_barrier")
    def warm_code(tag, lab, nlines):
        A("s_getpc_b64 s[38:39]")
        A.label(f"L_pc{tag}")
        A(f"s_add_u32 s38, s38, {lab}-L_pc{tag}"); A("s_addc_u32 s39, s39, 0")
        A("v_lshlrev_b32 v20, 7, v0")
        for i in range((nlines + 63) // 64):
            if i: A("v_add_u32 v20, 8192, v20")
            A(f"v_min_u32 v21, {(nlines-1)*128}, v20")
            A(f"global_load_dword v{22+i}, v21, s[38:39]")
    A("s_cmp_eq_u32 s23, 0"); A("s_cbranch_scc1 L_hrank")
    lsl = lsleep; lsleep = hsleep
    A(f"s_and_b32 s57, s22, {sspread}"); A(f"s_add_u32 s57, s57, {3 if sspread else 0}")
    space("f", "L_end2")
    lsleep = lsl
    A("s_mov_b64 exec, 0xf")
    A(f"buffer_store_dword v9, v12, s[52:55], s35 offen {xst}")
    A("s_waitcnt vmcnt(0)")
    A("s_mov_b64 exec, 1")
    if smode == 'atomic': A("global_atomic_or v15, v16, s[18:19] sc1")
    elif smode == 'store': A("global_store_short v15, v2, s[18:19] sc1")
    A("s_mov_b64 exec, -1")
    A("ds_write_b32 v1, v2 offset:4")
    A.label("L_hrank")
    for n, cL in enumerate(ckpt):
        A.label(f"L_hck{n}")
        A(f"s_sleep {hsleep}")
        A("ds_read_b32 v14, v1"); A("s_sub_u32 s25, s25, 1"); A("s_cbranch_scc1 L_end2"); A("s_waitcnt lgkmcnt(0)")
        A("v_readfirstlane_b32 s37, v14"); A(f"s_cmp_lt_i32 s37, {cL}"); A(f"s_cbranch_scc1 L_hck{n}")
        A("s_mov_b64 exec, 1")
        A(f"global_atomic_add v14, v9, v2, s[18:19] offset:{128 + 4*n} sc0 sc1")
        A("s_mov_b64 exec, -1")
        A("s_waitcnt vmcnt(0)")
        A("v_readfirstlane_b32 s37, v14")
        A(f"s_mov_b32 s38, {rsel[0]-wdef}")
        for th, sel in zip(rthr, rsel[1:]):
            A(f"s_cmp_ge_u32 s37, {th}"); A(f"s_cselect_b32 s38, {sel-wdef}, s38")
        A("v_mov_b32 v8, s38"); A("ds_write_b32 v1, v8 offset:8")
    A("s_waitcnt lgkmcnt(0)")
    A("s_cmp_eq_u32 s23, 1"); A("s_cbranch_scc1 L_end2")
    lsl = lsleep; lsleep = hsleep
    A("s_sub_u32 s57, s24, 12")
    space("g", "L_end2")
    if warm & 2: warm_code("1", "L_fin", 24)
    A.label("L_hst")
    if smode == 'none': A("s_branch L_hst_ok")
    A("global_load_dword v14, v15, s[18:19] sc1" if smode == 'atomic' else "global_load_ushort v14, v15, s[18:19] sc1")
    A("s_sub_u32 s25, s25, 64"); A("s_cbranch_scc1 L_end2")
    A("s_waitcnt vmcnt(0)")
    A("v_readfirstlane_b32 s37, v14"); A("s_and_b32 s37, s37, s36"); A("s_cbranch_scc1 L_hst_ok")
    A(f"s_sleep {hsleep}"); A("s_branch L_hst")
    A.label("L_hst_ok")
    A("s_sub_u32 s57, s24, 5")
    lsleep = lsl
    space("h", "L_end2")
    A.label("L_fpoll")
    A(f"buffer_load_dword v14, v12, s[52:55], s35 offen {xld}")
    A("s_sub_u32 s25, s25, 64"); A("s_cbranch_scc1 L_end2")
    A("s_waitcnt vmcnt(0)")
    A("v_cmp_ne_u32 vcc, 1, v14"); A("s_cbranch_vccz L_fok")
    if fsleep: A(f"s_sleep {fsleep}")
    A("s_branch L_fpoll")
    A.label("L_fok")
    A("v_lshlrev_b32 v3, 4, v0")
    A(f"s_mul_i32 s35, s22, {OB_WG}"); A(f"s_add_u32 s35, s35, {OUTBOX}")
    A(f"s_mov_b32 m0, {MLB}"); A("s_add_u32 s34, s35, 32768")
    for q in range(4): A(f"buffer_load_dwordx4 v3, s[52:55], s34 offen offset:{q*1024} {xld} lds")
    A("s_and_b32 s30, s24, 7"); A("s_lshl_b32 s30, s30, 13")
    for r in range(4):
        for hh in range(2):
            A(f"s_add_u32 m0, s30, {hh*4096}")
            A("s_nop 0")
            for q in range(4): A(f"buffer_load_dwordx4 v3, s[52:55], s35 offen offset:{q*1024} {xld} lds")
            A("s_add_u32 s35, s35, 4096")
        A("s_add_u32 s30, s30, 8192"); A("s_and_b32 s30, s30, 0xffff")
    for k in range(4):
        A(f"v_mov_b32 v8, {k+1}"); A(f"s_waitcnt vmcnt({24-8*k})"); A("ds_write_b32 v1, v8 offset:4")
    if diag == 1:
        A("s_memrealtime s[86:87]"); A("s_waitcnt lgkmcnt(0)")
        A("v_mov_b32 v16, s86"); A("v_mov_b32 v17, s87"); A("s_lshl_b32 s34, s2, 6")
        A("s_mov_b64 exec, 1")
        A("buffer_store_dwordx2 v[16:17], v9, s[52:55], s34 offen offset:56")
    A("s_waitcnt lgkmcnt(0)")
    A.label("L_end2")
    A("s_endpgm")

    A.label("L_consumer")
    vQ, vO, vSA, vSB, vK, vV, vT = 32, 64, 128, 144, 160, 192, 240
    vP = {'A': 224, 'B': 232}
    vM = (4, 6); vL = (5, 7); vAcc = (2, 3); vProgA, vProg, vTmp, vSum = 8, 9, 10, 11
    vKa, vVa = 12, 16
    sC, sTHR, sL, sNV, sNK, sEnd = 's26', 's27', 's28', 's29', 's30', 's32'
    MF = "v_mfma_f32_16x16x32_bf16"
    A("s_sub_u32 s3, s3, 2")
    A("v_and_b32 v24, 15, v0")
    A("v_lshrrev_b32 v25, 4, v0")
    A("v_lshlrev_b32 v26, 8, v24")
    A("v_lshl_add_u32 v27, v25, 4, v26")
    A("s_lshl_b32 s33, s22, 2"); A("s_add_u32 s33, s33, s3"); A("s_lshl_b32 s33, s33, 13")
    A("s_add_u32 s35, s33, 4096")
    A("s_mov_b32 s38, 0x400000"); A("s_mov_b32 s39, 0x20000")
    A("s_mov_b32 s42, 0x8000"); A("s_mov_b32 s43, 0x20000")
    A("v_lshlrev_b32 v28, 6, v24"); A("v_lshl_add_u32 v28, v25, 3, v28")
    A("s_lshr_b32 s34, s22, 3"); A("s_lshl_b32 s34, s34, 11")
    A("s_waitcnt lgkmcnt(0)")
    A("s_mov_b32 s36, s4"); A("s_mov_b32 s37, s5")
    if qlate: A("s_barrier")
    for qb in range(2):
        for ks in range(4):
            A(f"buffer_load_dwordx4 {vr(vQ+4*(qb*4+ks),4)}, v27, s[36:39], {'s33' if qb == 0 else 's35'} offen offset:{64*ks} {qflags}")
    A("s_mov_b32 s40, s14"); A("s_mov_b32 s41, s15")
    for kb in range(2):
        for qb in range(2):
            A(f"buffer_load_dwordx2 {vr(vT+2*(2*kb+qb),2)}, v28, s[40:43], s34 offen offset:{1024*qb+32*kb}")
    if not qlate: A("s_barrier")
    A("v_xor_b32 v29, v25, v24")
    A(f"v_lshl_add_u32 v{vKa}, v29, 4, v26")
    for ks in range(1, 4): A(f"v_xor_b32 v{vKa+ks}, {64*ks}, v{vKa}")
    A("v_lshrrev_b32 v29, 2, v0")
    A("v_lshlrev_b32 v30, 8, v29")
    A("v_and_b32 v29, 7, v29"); A("v_lshl_add_u32 v30, v29, 5, v30")
    A("v_and_b32 v29, 3, v0"); A("v_lshl_add_u32 v30, v29, 3, v30")
    A(f"v_add_u32 v{vVa}, {VRING}, v30")
    for db in range(1, 8): A(f"v_xor_b32 v{vVa+db}, {32*db}, v{vVa}")
    A(f"s_lshl_b32 s34, s3, 2"); A(f"s_add_u32 s34, s34, {CTL+16}"); A(f"v_mov_b32 v{vProgA}, s34")
    A(f"v_mov_b32 v{vProg}, 0")
    A(f"s_mov_b32 {sC}, {hex(f2u(math.log2(math.e) / math.sqrt(128.0)))}")
    A(f"s_mov_b32 {sTHR}, {hex(f2u(thr))}")
    A(f"s_mov_b32 {sL}, 0")
    for qb in range(2):
        A(f"v_mov_b32 v{vM[qb]}, 0xff800000"); A(f"v_mov_b32 v{vL[qb]}, 0"); A(f"v_mov_b32 v{vAcc[qb]}, 0x7f800000")
    for i in range(64): A(f"v_mov_b32 v{vO+i}, 0")
    A(f"s_mov_b32 s35, {hex(f2u(-1e9 * math.sqrt(128.0)))}")
    A(f"s_cmp_eq_u32 s23, {treehalf}")
    A("s_cselect_b32 s35, s35, 0")
    A(f"s_lshl_b32 {sEnd}, s24, 1"); A(f"s_add_u32 {sEnd}, {sEnd}, 4")
    A("s_waitcnt vmcnt(0)")
    for g in range(4):
        for i in range(4):
            src = vT + 2*g + i//2
            if i % 2 == 0: A(f"v_lshlrev_b32 v{vSA+4*g+i}, 16, v{src}")
            else: A(f"v_and_b32 v{vSA+4*g+i}, 0xffff0000, v{src}")
    for i in range(16): A(f"v_fma_f32 v{vSA+i}, v{vSA+i}, -s35, s35")

    polls = []
    def wait_L(need):
        n = len(polls)
        body = [f"L_pent{n}:", f"s_cmp_eq_u32 {need}, {sEnd}", "s_cbranch_scc1 L_fin", f"L_poll{n}:", f"ds_read_b32 v{vTmp}, v1", "s_sub_u32 s25, s25, 1", "s_cbranch_scc1 L_end1", "s_waitcnt lgkmcnt(0)",
                f"v_readfirstlane_b32 {sL}, v{vTmp}", f"s_cmp_ge_i32 {sL}, {need}", f"s_cbranch_scc1 L_ok{n}"]
        if csleep: body.append(f"s_sleep {csleep}")
        body.append(f"s_branch L_poll{n}")
        polls.append(body)
        return [f"s_cmp_ge_i32 {sL}, {need}", f"s_cbranch_scc0 L_pent{n}", f"L_ok{n}:"]
    def Kf(ks, kb): return vK + 4*(2*ks + kb)
    def k_reads(slot): return [f"ds_read_b128 {vr(Kf(ks,kb),4)}, v{vKa+ks} offset:{slot*8192+kb*4096}" for ks in range(4) for kb in range(2)]
    def v_reads(slot): return [f"ds_read_b64_tr_b16 {vr(vV+4*db+2*u,2)}, v{vVa+db} offset:{slot*8192+u*4096}" for db in range(8) for u in range(2)]
    def qk(S, init):
        return [f"{MF} {vr(S+4*(2*kb+qb),4)}, {vr(Kf(ks,kb),4)}, {vr(vQ+4*(qb*4+ks),4)}, {'0' if (ks == 0 and not init) else vr(S+4*(2*kb+qb),4)}"
                for ks in range(4) for kb in range(2) for qb in range(2)]
    def pv(X):
        return [f"{MF} {vr(vO+4*(2*db+qb),4)}, {vr(vV+4*db,4)}, {vr(vP[X]+4*qb,4)}, {vr(vO+4*(2*db+qb),4)}" for db in range(8) for qb in range(2)]
    def softmax(S, X):
        def T(k, e): return vT + 2*(k % 4) + e
        def Sk(k, e): qb = k & 1; jj = k >> 1; return S + 4*(2*(jj >> 1) + qb) + 2*(jj & 1) + e
        def Pk(k): return vP[X] + 4*(k & 1) + (k >> 1)
        F = lambda k: [f"v_fma_f32 v{T(k,e)}, v{Sk(k,e)}, {sC}, -v{vM[k&1]}" for e in range(2)]
        E = lambda k: [f"v_exp_f32 v{T(k,e)}, v{T(k,e)}" for e in range(2)]
        def AC(k):
            a = vAcc[k & 1]
            c = f"v_cvt_pk_bf16_f32 v{Pk(k)}, v{T(k,0)}, v{T(k,1)}"
            if k < 2: return [f"v_add_f32 v{a}, v{T(k,0)}, v{T(k,1)}", c]
            return [f"v_add_f32 v{a}, v{a}, v{T(k,0)}", c, f"v_add_f32 v{a}, v{a}, v{T(k,1)}"]
        out = F(0) + F(1) + E(0)
        for k in range(8):
            if k + 2 < 8: out += F(k+2)
            if k + 1 < 8: out += E(k+1)
            out += AC(k)
        return out

    A(f"s_mov_b32 {sNK}, 1")
    A(wait_L(sNK)); A(k_reads(0))
    A("s_waitcnt lgkmcnt(0)")
    A(qk(vSA, True))
    A(f"s_mov_b32 {sNK}, 2")
    A(wait_L(sNK)); A(k_reads(1))
    A(f"s_mov_b32 {sNV}, 4")
    A(wait_L(sNV))
    A("s_waitcnt lgkmcnt(0)")
    if diag: A("s_memrealtime s[82:83]"); A("s_memtime s[88:89]"); A("s_waitcnt lgkmcnt(0)")
    stubs = []
    def flt(L):
        ds = [d for d in drop.split(',') if d]
        return [x for x in L if not any(x.startswith(d) for d in ds)]
    def spread(stream, n):
        tot = sum(cost(x) for x in stream); out = [[] for _ in range(n)]; acc = 0
        for x in stream:
            g = min(n - 1, int((acc + cost(x) / 2.0) * n / tot))
            out[g].append(x); acc += cost(x)
        return out
    A(".p2align 3")
    for i in range(NS):
        X, Y = ('A', 'B') if i % 2 == 0 else ('B', 'A')
        Scur, Snext = (vSA, vSB) if X == 'A' else (vSB, vSA)
        A.label(f"L_body{i}")
        B = []
        q = qk(Snext, False); vrd = v_reads(i); kr = k_reads((i + 2) % NS); p = pv(X)
        st = spread(softmax(Scur, X)[nB:] + [f"v_add_f32 v{vSum}, v{vAcc[0]}, v{vAcc[1]}", f"v_cmp_nge_f32 vcc, {sTHR}, v{vSum}"], 14)
        for g in range(14):
            B.append(q[g])
            nv = 2 if g < 2 else 1
            B += vrd[:nv]; vrd = vrd[nv:]
            B += st[g]
        assert not vrd
        B.append(q[14]); B += kr[0:2]
        B.append(q[15]); B.append("s_waitcnt lgkmcnt(6)"); B += kr[2:3]
        if not drop: B.append(f"s_cbranch_vccnz L_stub{i}")
        B.append(f"L_cont{i}:")
        stubs.append([f"L_stub{i}:", f"s_call_b64 s[62:63], L_slow{X}", f"s_branch L_cont{i}"])
        st = spread(softmax(Snext, Y)[:nB], 13)
        w = wait_L(sNV)
        B.append(p[0]); B += kr[3:4]; B.append(f"v_add_f32 v{vL[0]}, v{vL[0]}, v{vAcc[0]}")
        B.append(p[1]); B += kr[4:5]; B.append(f"v_add_f32 v{vL[1]}, v{vL[1]}, v{vAcc[1]}")
        B.append(p[2]); B += kr[5:6]; B.append(f"v_add_u32 v{vProg}, 1, v{vProg}")
        for g in range(3, 16):
            B.append(p[g])
            if g == 3: B += kr[6:7]
            if g == 4: B += kr[7:8]
            if g == 5: B += ["s_waitcnt lgkmcnt(8)", f"ds_write_b32 v{vProgA}, v{vProg}"]
            if g == 12: B.append(f"s_add_u32 {sNV}, {sNV}, 2")
            if g == 13: B.append(w[0])
            if g == 14: B.append("s_waitcnt lgkmcnt(0)")
            B += st[g - 3]
        if i < NS - 1: B += w[1:]
        else:
            n = len(polls) - 1
            B += ["s_cbranch_scc1 L_body0", f"s_branch L_pent{n}"]
            polls[n] = [x.replace(f"L_ok{n}", "L_body0") for x in polls[n]]
        A(flt(B))
    def xreduce(op, regs, tmps):
        for sw in ("v_permlane16_swap_b32", "v_permlane32_swap_b32"):
            for r, t in zip(regs, tmps): A(f"v_mov_b32 v{t}, v{r}")
            A("s_nop 1")
            for r, t in zip(regs, tmps): A(f"{sw} v{t}, v{r}")
            A("s_nop 1")
            for r, t in zip(regs, tmps): A(f"{op} v{r}, v{r}, v{t}")
    A.label("L_fin")
    if diag: A("s_memrealtime s[84:85]"); A("s_memtime s[90:91]")
    xreduce("v_add_f32", vL, (vT, vT+1))
    A("s_mov_b32 s44, s20"); A("s_mov_b32 s45, s21")
    A("s_mov_b32 s46, 0x4000000"); A("s_mov_b32 s47, 0x20000")
    A("v_lshlrev_b32 v12, 4, v0")
    A("s_cmp_eq_u32 s23, 0"); A("s_cbranch_scc1 L_recv")
    A(f"s_mul_i32 s35, s22, {OB_WG}"); A(f"s_add_u32 s35, s35, {OUTBOX}")
    A("s_lshl_b32 s34, s3, 10"); A("s_add_u32 s34, s34, s35"); A("s_add_u32 s34, s34, 32768")
    A(f"buffer_store_dwordx4 v[4:7], v12, s[44:47], s34 offen {xst}")
    A("s_lshl_b32 s34, s3, 13"); A("s_add_u32 s35, s35, s34")
    A("s_waitcnt lgkmcnt(0)")
    for i in range(8):
        for e in range(4): A(f"v_cvt_pk_bf16_f32 v{vK+4*i+e}, v{vO+8*i+2*e}, v{vO+8*i+2*e+1}")
        if i == 4: A(f"s_add_u32 s35, s35, 4096")
        A(f"buffer_store_dwordx4 {vr(vK+4*i,4)}, v12, s[44:47], s35 offen offset:{(i%4)*1024} {xst}")
    A("s_lshl_b32 s35, s22, 7"); A("s_lshl_b32 s34, s3, 2"); A("s_add_u32 s35, s35, s34"); A(f"s_add_u32 s35, s35, {FLAGS}")
    A("v_mov_b32 v14, 1"); A("v_mov_b32 v15, 0")
    A.label("L_sclr")
    A(f"ds_read_b32 v{vTmp}, v1 offset:4"); A("s_sub_u32 s25, s25, 1"); A("s_cbranch_scc1 L_end1"); A("s_waitcnt lgkmcnt(0)")
    A(f"v_readfirstlane_b32 s34, v{vTmp}")
    A("s_cmp_eq_u32 s34, 0"); A("s_cbranch_scc1 L_sclr")
    A("s_waitcnt vmcnt(0)")
    A("s_mov_b64 exec, 1")
    A(f"buffer_store_dword v14, v15, s[44:47], s35 offen {xst}")
    A("s_mov_b64 exec, -1")
    A("s_branch L_done")
    A.label("L_recv")
    A("s_add_u32 s34, s24, s3"); A("s_and_b32 s34, s34, 7"); A("s_lshl_b32 s34, s34, 13")
    A("s_lshl_b32 s35, s3, 10"); A(f"s_add_u32 s35, s35, {MLB}")
    A("v_add_u32 v13, s35, v12"); A("v_add_u32 v14, s34, v12")
    A("v_lshrrev_b32 v28, 1, v25"); A("v_xor_b32 v28, v28, v24"); A("v_lshl_add_u32 v28, v28, 4, v26")
    A("v_and_b32 v29, 1, v25"); A("v_lshl_add_u32 v28, v29, 3, v28"); A("v_add_u32 v28, s34, v28")
    A("v_xor_b32 v29, v24, v25"); A("v_lshlrev_b32 v29, 4, v29"); A("v_lshl_add_u32 v29, v25, 8, v29"); A("v_add_u32 v29, s34, v29")
    A.label("L_role")
    A(f"ds_read_b32 v{vTmp}, v1 offset:4"); A("s_sub_u32 s25, s25, 1"); A("s_cbranch_scc1 L_end1"); A("s_waitcnt lgkmcnt(0)")
    A(f"v_readfirstlane_b32 s35, v{vTmp}")
    A("s_cmp_gt_u32 s35, s3"); A("s_cbranch_scc0 L_role")
    if st3: A("s_memtime s[64:65]"); A("s_waitcnt lgkmcnt(0)")
    A("ds_read_b128 v[16:19], v13")
    for i in range(8): A(f"ds_read_b128 {vr(vK+4*i,4)}, v14 offset:{i*1024}")
    fa = (20, 22); fb = (128, 130)
    A("s_waitcnt lgkmcnt(8)")
    for qb in range(2):
        A(f"v_max_f32 v{vT+qb}, v{vM[qb]}, v{16+2*qb}")
        A(f"v_sub_f32 v{fa[qb]}, v{vM[qb]}, v{vT+qb}"); A(f"v_sub_f32 v{fb[qb]}, v{16+2*qb}, v{vT+qb}")
        A(f"v_exp_f32 v{fa[qb]}, v{fa[qb]}"); A(f"v_exp_f32 v{fb[qb]}, v{fb[qb]}")
    for qb in range(2):
        A(f"v_mul_f32 v{vT+qb}, v{vL[qb]}, v{fa[qb]}"); A(f"v_fma_f32 v{vT+qb}, v{17+2*qb}, v{fb[qb]}, v{vT+qb}")
    for qb in range(2): A(f"v_rcp_f32 v{vT+qb}, v{vT+qb}")
    A("s_nop 0")
    for qb in range(2):
        A(f"v_mul_f32 v{fa[qb]}, v{fa[qb]}, v{vT+qb}"); A(f"v_mul_f32 v{fb[qb]}, v{fb[qb]}, v{vT+qb}")
        A(f"v_mov_b32 v{fa[qb]+1}, v{fa[qb]}"); A(f"v_mov_b32 v{fb[qb]+1}, v{fb[qb]}")
    A("s_waitcnt lgkmcnt(0)")
    for q in range(16):
        db, qb = q >> 1, q & 1
        u = 136 + 4*(q % 2)
        for e in range(2):
            A(f"v_lshlrev_b32 v{u+2*e}, 16, v{vK+2*q+e}"); A(f"v_and_b32 v{u+2*e+1}, 0xffff0000, v{vK+2*q+e}")
        for e in range(2): A(f"v_pk_mul_f32 {vr(vO+4*q+2*e,2)}, {vr(vO+4*q+2*e,2)}, {vr(fa[qb],2)}")
        for e in range(2): A(f"v_pk_fma_f32 {vr(vO+4*q+2*e,2)}, {vr(u+2*e,2)}, {vr(fb[qb],2)}, {vr(vO+4*q+2*e,2)}")
        A(f"v_cvt_pk_bf16_f32 v{vT+2*(q%4)}, v{vO+4*q}, v{vO+4*q+1}")
        A(f"v_cvt_pk_bf16_f32 v{vT+2*(q%4)+1}, v{vO+4*q+2}, v{vO+4*q+3}")
        if qb == 0: A(f"v_xor_b32 v30, {32*db}, v28")
        A(f"ds_write_b64 v30, {vr(vT+2*(q%4),2)} offset:{qb*4096}")
    A("s_mov_b32 s40, s16"); A("s_mov_b32 s41, s17"); A("s_mov_b32 s42, 0x400000"); A("s_mov_b32 s43, 0x20000")
    if st3: A("s_memtime s[66:67]")
    A("s_waitcnt lgkmcnt(0)")
    for k in range(8):
        A(f"v_xor_b32 v30, {((4*k)&15)*16}, v29")
        A(f"ds_read_b128 {vr(vK+4*k,4)}, v30 offset:{k*1024}")
    for k in range(8):
        if k == 4: A("s_add_u32 s33, s33, 4096")
        A(f"s_waitcnt lgkmcnt({7-k})")
        A(f"buffer_store_dwordx4 {vr(vK+4*k,4)}, v12, s[40:43], s33 offen offset:{(k%4)*1024} {stflags}")
    if st3: A("s_memtime s[68:69]")
    A.label("L_done")
    if probe and probe[0] == 'C':
        A("s_waitcnt vmcnt(0)"); spin('C')
    if diag == 1:
        A("s_waitcnt vmcnt(0)")
        A("s_memrealtime s[86:87]")
        A("s_cmp_lg_u32 s3, 0"); A("s_cbranch_scc1 L_end1")
        A("s_waitcnt lgkmcnt(0)")
        if st3:
            A("s_memtime s[70:71]"); A("s_waitcnt lgkmcnt(0)")
            A("s_sub_u32 s70, s70, s68"); A("s_sub_u32 s68, s68, s66"); A("s_sub_u32 s66, s66, s64"); A("s_sub_u32 s64, s64, s90")
            A("v_mov_b32 v24, s64"); A("v_mov_b32 v25, s66"); A("v_mov_b32 v26, s68"); A("v_mov_b32 v27, s70")
        A("s_sub_u32 s90, s90, s88")
        for i in range(8): A(f"v_mov_b32 v{16+i}, s{80+i}")
        if not st3: A("v_mov_b32 v24, s90")
        A("s_lshl_b32 s34, s2, 6"); A("v_mov_b32 v15, 0")
        A("s_mov_b64 exec, 1")
        A("s_lshl_b32 s35, s2, 4"); A("s_add_u32 s35, s35, 65536")
        A("buffer_store_dwordx4 v[24:27], v15, s[44:47], s35 offen")
        A("buffer_store_dwordx4 v[16:19], v15, s[44:47], s34 offen")
        A("buffer_store_dwordx4 v[20:23], v15, s[44:47], s34 offen offset:16")
    A.label("L_end1")
    A("s_endpgm")
    for p in polls: A(p)
    for p in stubs: A(p)
    def slow(X, S):
        A.label(f"L_slow{X}")
        t = (vT, vT + 1); u = (vT + 2, vT + 3)
        for qb in range(2):
            e = [S + 4*(2*kb + qb) + r for kb in range(2) for r in range(4)]
            A(f"v_max3_f32 v{t[qb]}, v{e[0]}, v{e[1]}, v{e[2]}")
            A(f"v_max3_f32 v{t[qb]}, v{t[qb]}, v{e[3]}, v{e[4]}")
            A(f"v_max3_f32 v{t[qb]}, v{t[qb]}, v{e[5]}, v{e[6]}")
            A(f"v_max_f32 v{t[qb]}, v{t[qb]}, v{e[7]}")
        xreduce("v_max_f32", t, u)
        for qb in range(2):
            A(f"v_mul_f32 v{t[qb]}, {sC}, v{t[qb]}")
            A(f"v_max_f32 v{t[qb]}, v{t[qb]}, v{vM[qb]}")
            A(f"v_sub_f32 v{u[qb]}, v{vM[qb]}, v{t[qb]}")
            A(f"v_exp_f32 v{u[qb]}, v{u[qb]}")
            A(f"v_mov_b32 v{vM[qb]}, v{t[qb]}")
        for qb in range(2): A(f"v_mul_f32 v{vL[qb]}, v{vL[qb]}, v{u[qb]}")
        for i in range(64): A(f"v_mul_f32 v{vO+i}, v{vO+i}, v{u[(i//4)&1]}")
        A(softmax(S, X))
        A("s_setpc_b64 s[62:63]")
    slow('A', vSA)
    slow('B', vSB)
    A.label("L_codeend")
    A('.section .rodata,"a"'); A(".p2align 6")
    A(f".amdhsa_kernel {KNAME}")
    A(".amdhsa_next_free_vgpr 248"); A(".amdhsa_next_free_sgpr 96"); A(".amdhsa_accum_offset 248")
    A(".amdhsa_group_segment_fixed_size 0"); A(".amdhsa_kernarg_size 72"); A(".amdhsa_user_sgpr_count 2")
    A(".amdhsa_user_sgpr_kernarg_segment_ptr 1"); A(".amdhsa_system_sgpr_workgroup_id_x 1")
    A(".end_amdhsa_kernel")
    return A.text()

if __name__ == '__main__':
    kw = eval("dict(%s)" % (sys.argv[2] if len(sys.argv) > 2 else ""))
    open(sys.argv[1], 'w').write(gen(**kw))
```

```python
import sys, math, struct
KNAME = "standalone__tree_speculative_verify_tree_attention_over_candidate_token_tree__sampling_kernel"
def f2u(x): return struct.unpack('<I', struct.pack('<f', x))[0]

class Asm:
    def __init__(self): self.L = []
    def __call__(self, s):
        if isinstance(s, (list, tuple)):
            for x in s: self(x)
        else: self.L.append(s)
    def label(self, s): self.L.append(s + ":")
    def text(self): return "\n".join(("    " + l if not l.endswith(":") and not l.startswith(";") and not l.startswith(".") else l) for l in self.L) + "\n"

def cost(x):
    if x.endswith(':'): return 0
    return 2 if x.startswith('v_exp') else 1

HEADER = """; Tree-attention verify (GQA, B=16 Hq=32 Hkv=8 T=32 C=4096 D=128), bf16.
"""

def gen(Ws=(20, 32), wdef=0, w1=1, N1=3, w2=1, S2=59, Ts=60,
        ldflags='nt', qflags='', stflags='sc1', xst='sc1', xld='sc1', diag=0, thr=1024.0,
        lsleep=1, csleep=1, fsleep=1, hsleep=4, drop='', probe=None, trace=0, ramp=(44, 1, 66, 9), nB=20, warm=1, st2=0, st3=0, W0=32, NP=0, pfx=3, pfl='', pfw=4, st4=0, cap=6.9, S3=200, rend=96, Hcap=30):
    if probe: diag = 2
    A = Asm()
    NS = 8
    VRING = NS * 8192
    MLB = 2 * NS * 8192
    CTL = MLB + 4096
    LDS = CTL + 64
    OUTBOX = 1 << 20
    OB_WG = 4 * 8192 + 4096
    FLAGS = 32 << 20
    SPIN = 1 << 22
    LOG2E = math.log2(math.e)
    def vr(b, n=1): return f"v{b}" if n == 1 else f"v[{b}:{b+n-1}]"
    for l in HEADER.strip().split("\n"): A(l)
    A(f"; @launch grid=(256,1,1) block=(384,1,1) lds={LDS}")
    A('.amdgcn_target "amdgcn-amd-amdhsa--gfx950"')
    A(".text"); A(f".globl {KNAME}"); A(".p2align 8"); A(f".type {KNAME},@function"); A.label(KNAME)
    A("s_cmp_ge_u32 s2, 256"); A("s_cbranch_scc1 L_end0")
    if diag: A("s_memrealtime s[80:81]")
    A("s_load_dwordx16 s[4:19], s[0:1], 0")
    A("s_load_dwordx2 s[20:21], s[0:1], 64")
    A("v_lshrrev_b32 v1, 6, v0")
    A("v_and_b32 v0, 63, v0")
    A("v_readfirstlane_b32 s3, v1")
    if warm & 1:
        A("s_cmp_lg_u32 s3, 1"); A("s_cbranch_scc1 L_nowarm")
        A("s_getpc_b64 s[38:39]")
        A.label("L_pc0")
        A("s_bfe_u32 s36, s2, 0x10003"); A("s_lshl_b32 s36, s36, 13")
        A("v_lshl_add_u32 v20, v0, 7, s36"); A("v_min_u32 v20, L_codeend-L_pc0-4, v20")
        A("global_load_dword v22, v20, s[38:39]")
        A.label("L_nowarm")
    A("v_lshrrev_b32 v2, 4, v0"); A("v_and_b32 v3, 15, v0")
    A(f"v_mov_b32 v1, {CTL}")
    A("v_and_b32 v8, 12, v3"); A("v_cmp_eq_u32 vcc, 4, v8"); A("v_lshl_add_u32 v10, v3, 2, v1"); A("v_mov_b32 v9, 0")
    A("v_cndmask_b32 v8, 0, -5, vcc")
    A("ds_write_b32 v10, v8")
    A("v_xor_b32 v4, v3, v2"); A("v_lshlrev_b32 v4, 4, v4")
    A("v_lshl_add_u32 v4, v2, 8, v4")
    for k in range(1, 4): A(f"v_xor_b32 v{4+k}, {64*k}, v4")
    A("s_and_b32 s22, s2, 7"); A("s_lshr_b32 s23, s2, 4"); A("s_lshl_b32 s23, s23, 3"); A("s_or_b32 s22, s22, s23")
    A("s_bfe_u32 s23, s2, 0x10003")
    A("s_lshl_b32 s2, s22, 1"); A("s_or_b32 s2, s2, s23")
    A(f"s_mov_b32 s25, {SPIN}")
    A("s_mov_b32 s39, 0x20000")
    A("s_cmp_eq_u32 s23, 0")
    A(f"s_cselect_b32 s24, {129-Ts}, {Ts}")
    A("s_cmp_eq_u32 s3, 0"); A("s_cbranch_scc1 L_loader")
    A("s_cmp_eq_u32 s3, 1"); A("s_cbranch_scc1 L_bar1")
    A("s_sub_u32 s3, s3, 2")
    A("s_lshl_b32 s33, s22, 2"); A("s_add_u32 s33, s33, s3"); A("s_lshl_b32 s33, s33, 13")
    A("s_add_u32 s35, s33, 4096")
    A("s_lshl_b32 s34, s3, 13"); A("s_add_u32 s34, s34, 32768")
    A("s_mov_b32 s38, 0x400000"); A("s_mov_b32 m0, s34")
    A("s_waitcnt lgkmcnt(0)")
    A("s_mov_b32 s36, s4"); A("s_mov_b32 s37, s5")
    for q in range(8):
        if q == 4: A("s_add_u32 m0, s34, 4096"); A("s_nop 0")
        A(f"buffer_load_dwordx4 v{4+(q&3)}, s[36:39], {'s33' if q < 4 else 's35'} offen offset:{(q&3)*1024} {qflags} lds")
    A("s_cmp_lg_u32 s23, 0"); A("s_cbranch_scc1 L_nomask")
    A("s_mov_b32 s40, s14"); A("s_mov_b32 s41, s15"); A("s_mov_b32 s42, 0x8000"); A("s_mov_b32 s43, 0x20000")
    A("v_lshlrev_b32 v28, 6, v3"); A("v_lshl_add_u32 v28, v2, 3, v28")
    A("s_lshr_b32 s35, s22, 3"); A("s_lshl_b32 s35, s35, 11")
    for kb in range(2):
        for qb in range(2):
            A(f"buffer_load_dwordx2 {vr(240+2*(2*kb+qb),2)}, v28, s[40:43], s35 offen offset:{1024*qb+32*kb}")
    A.label("L_nomask")
    A("s_barrier")
    A("s_branch L_consumer")
    A.label("L_bar1")
    A("s_waitcnt lgkmcnt(0)")
    A("s_barrier")
    A("s_branch L_helper")

    A.label("L_loader")
    A("s_setprio 3")
    A("s_lshl_b32 s26, s22, 20"); A(f"s_mul_i32 s27, s23, {(128-Ts)*8192}"); A("s_add_u32 s26, s26, s27")
    A("s_mov_b32 s38, 0x8000000")
    A("s_mov_b32 s30, 0")
    A("s_mov_b32 s32, 0")
    A("s_waitcnt lgkmcnt(0)")
    if st2 == 1: A("s_memrealtime s[90:91]")
    A("s_mov_b32 s36, s6"); A("s_mov_b32 s37, s7")
    issued = [0]
    def publish(D):
        A(f"s_sub_u32 s68, s32, {D}")
        if ramp:
            r0, k, rmax, lagx = ramp
            if Hcap: A("s_waitcnt lgkmcnt(0)"); A("v_readfirstlane_b32 s69, v19"); A("ds_read_b32 v19, v1 offset:16")
            A("s_cmp_gt_i32 s68, 4")
            A("s_cselect_b32 s66, s65, 0"); A(f"s_cselect_b32 s67, {k}, 0")
            A("s_add_u32 s64, s64, s66"); A("s_add_u32 s65, s65, s67"); A("s_min_u32 s65, s65, s77")
            if Hcap:
                A("s_max_i32 s69, s69, 0"); A("s_lshl_b32 s69, s69, 7"); A(f"s_add_u32 s69, s69, {int(cap*64)}")
                A(f"s_cmp_lt_u32 s32, {Hcap}"); A("s_cselect_b32 s69, s69, s64"); A("s_min_i32 s64, s64, s69")
            A(f"s_sub_u32 s67, s32, {lagx+2}"); A("s_lshl_b32 s67, s67, 6"); A("s_max_i32 s64, s64, s67")
            A("s_lshr_b32 s66, s64, 6"); A("s_min_i32 s68, s66, s68")
        A("v_mov_b32 v8, s68"); A("ds_write_b32 v1, v8")
    def step(srd, soff, slot, isK, W, startup=False):
        qstar = (W - 2) % 8
        for q in range(8):
            if q == 0: A(f"s_mov_b32 m0, {slot}"); A(f"s_add_u32 s34, {soff}, 4096")
            if q == 4: A(f"s_add_u32 m0, {slot}, 4096"); A("s_nop 0")
            v = 4 + (q & 3) if isK else 17 + (q & 1)
            A(f"buffer_load_dwordx4 v{v}, {srd}, {soff if q < 4 else 's34'} offen offset:{(q&3)*1024} {ldflags} lds")
            issued[0] += 1
            if not (startup and issued[0] < W):
                A(f"s_waitcnt vmcnt({W-1})")
                if q == qstar: publish((W - 2) // 8)
        A("s_add_u32 s32, s32, 1")
        A(f"s_add_u32 {slot}, {slot}, 8192")
        if not startup:
            A(f"s_and_b32 {slot}, {slot}, 0xffff")
            if not isK: A(f"s_bitset1_b32 {slot}, 16")
    step("s[36:39]", "s26", "s30", True, W0, True)
    A("s_barrier")
    A("s_mov_b32 s29, s26")
    A("s_add_u32 s26, s26, 8192")
    A("s_lshl_b32 s27, s22, 13")
    A("s_mov_b32 s47, 0x20000"); A("s_mov_b32 s51, 0x20000")
    A("s_cmp_eq_u32 s23, 0")
    A("s_cselect_b32 s46, 0x100000, s38"); A("s_cselect_b32 s50, 0x100000, s38")
    A("s_cselect_b32 s44, s10, s6"); A("s_cselect_b32 s45, s11, s7")
    A("s_cselect_b32 s48, s12, s8"); A("s_cselect_b32 s49, s13, s9")
    A("s_cselect_b32 s27, s27, s26")
    A("s_cselect_b32 s28, 0, 8192")
    step("s[44:47]", "s27", "s30", True, W0, True)
    A("v_lshlrev_b32 v17, 1, v2"); A("v_xor_b32 v17, v3, v17"); A("v_lshlrev_b32 v17, 4, v17")
    A("v_lshl_add_u32 v17, v2, 8, v17")
    A("v_xor_b32 v18, 128, v17")
    A("s_mov_b32 s40, s8"); A("s_mov_b32 s41, s9"); A("s_mov_b32 s42, 0x8000000"); A("s_mov_b32 s43, 0x20000")
    A(f"s_mov_b32 s31, {VRING}")
    if ramp: A(f"s_mov_b32 s64, {4*64}"); A(f"s_mov_b32 s65, {ramp[0]}"); A(f"s_mov_b32 s77, {ramp[2]}"); A("v_mov_b32 v19, 0")
    A("s_add_u32 s26, s26, s28")
    step("s[40:43]", "s29", "s31", False, W0, True)
    if st2 == 1: A("s_memrealtime s[92:93]"); A("s_waitcnt vmcnt(16)")
    if diag: A("s_memrealtime s[88:89]")
    A("s_mov_b32 s29, s26")
    step("s[36:39]", "s26", "s30", True, W0, True); A("s_add_u32 s26, s26, 8192")
    step("s[48:51]", "s27", "s31", False, W0, True)
    if trace: A("v_mov_b32 v30, 0"); A("v_mov_b32 v31, 0")
    A("v_and_b32 v11, 3, v0"); A("v_lshlrev_b32 v12, 2, v11"); A(f"v_add_u32 v11, {CTL+16}, v12")
    A("s_mov_b32 s33, -5")
    A("s_mov_b32 s56, 2")
    def space(tag, endl, sl):
        A("s_cmp_ge_i32 s33, s57"); A(f"s_cbranch_scc1 L_space{tag}")
        A("v_mov_b32 v13, s57")
        A.label(f"L_spoll{tag}")
        A("ds_read_b32 v14, v11"); A("s_sub_u32 s25, s25, 1"); A(f"s_cbranch_scc1 {endl}"); A("s_waitcnt lgkmcnt(0)")
        A("v_cmp_lt_i32 vcc, v14, v13"); A(f"s_cbranch_vccz L_sok{tag}")
        if sl: A(f"s_sleep {sl}")
        A(f"s_branch L_spoll{tag}")
        A.label(f"L_sok{tag}")
        A("v_readlane_b32 s33, v14, 0"); A("v_readlane_b32 s58, v14, 1"); A("v_readlane_b32 s59, v14, 2"); A("v_readlane_b32 s60, v14, 3")
        A("s_min_i32 s33, s33, s58"); A("s_min_i32 s59, s59, s60"); A("s_min_i32 s33, s33, s59")
        A.label(f"L_space{tag}")
    A.label("L_top")
    A(f"s_sub_u32 s57, s56, {NS-1}")
    space("a", "L_end0", lsleep)
    A(f"s_cmp_lt_u32 s56, {N1}"); A(f"s_cselect_b32 s76, {w1}, {wdef}")
    A(f"s_cmp_ge_u32 s56, {S2}"); A(f"s_cselect_b32 s76, {w2}, s76")
    if ramp and S3 < 200: A(f"s_cmp_ge_u32 s56, {S3}"); A(f"s_cselect_b32 s77, {rend}, s77")
    A("s_add_u32 s56, s56, 1")
    A("s_cmp_ge_u32 s56, s24"); A(f"s_cbranch_scc1 L_unitV{w2}")
    if trace: A("s_memrealtime s[70:71]"); A("s_memtime s[72:73]")
    order = [k for k in range(len(Ws)) if k != w2] + [w2]
    for n, k in enumerate(order):
        A.label(f"L_unit{k}")
        if n < len(order) - 1:
            A(f"s_cmp_lg_u32 s76, {k}"); A(f"s_cbranch_scc1 L_unit{order[n+1]}")
        step("s[36:39]", "s26", "s30", True, Ws[k]); A("s_add_u32 s26, s26, 8192")
        A.label(f"L_unitV{k}")
        step("s[40:43]", "s29", "s31", False, Ws[k]); A("s_add_u32 s29, s29, 8192")
        if trace:
            A("s_waitcnt lgkmcnt(0)"); A("s_sub_u32 s74, s56, 2"); A("s_min_u32 m0, s74, 63")
            A("v_writelane_b32 v30, s70, m0"); A("v_writelane_b32 v31, s72, m0")
        if k != w2: A("s_branch L_top")
        else: A("s_cmp_lt_u32 s56, s24"); A("s_cbranch_scc1 L_top")
    if diag: A("s_memrealtime s[82:83]")
    D = (Ws[w2] - 2) // 8
    assert D >= 1 and min(Ws) >= 10
    for r in range(D, 0, -1):
        A(f"s_sub_u32 s68, s32, {r if r > 1 else 0}")
        A("v_mov_b32 v8, s68")
        A(f"s_waitcnt vmcnt({8*r})")
        A("ds_write_b32 v1, v8")
    A("s_add_u32 s68, s32, 2")
    A("v_mov_b32 v8, s68")
    A("s_waitcnt vmcnt(0)")
    A("ds_write_b32 v1, v8")
    if diag: A("s_memrealtime s[84:85]")
    A("s_waitcnt lgkmcnt(0)")
    def spin(tag):
        who, base, reg, mult = probe[:4]
        if len(probe) > 4: A(f"s_cmp_lg_u32 s2, {probe[4]}"); A(f"s_cbranch_scc1 L_spinx{tag}")
        A("s_memrealtime s[86:87]"); A("s_waitcnt lgkmcnt(0)")
        A(f"s_sub_u32 s94, s{reg}, s80"); A(f"s_mul_i32 s94, s94, {mult}"); A(f"s_add_u32 s94, s94, {base*100}")
        A("s_min_u32 s94, s94, 50000")
        A.label(f"L_spin{tag}")
        A("s_sleep 2"); A("s_memrealtime s[78:79]"); A("s_waitcnt lgkmcnt(0)")
        A("s_sub_u32 s78, s78, s80"); A("s_cmp_lt_u32 s78, s94"); A(f"s_cbranch_scc1 L_spin{tag}")
        A.label(f"L_spinx{tag}")
    if probe and probe[0] == 'L': spin('L')
    if diag == 1:
        A("s_mov_b32 s52, s20"); A("s_mov_b32 s53, s21"); A("s_mov_b32 s54, 0x4000000"); A("s_mov_b32 s55, 0x20000")
        if st2:
            A("s_sub_u32 s90, s90, s80"); A("s_sub_u32 s92, s92, s80"); A("s_sub_u32 s88, s88, s80")
            A("s_lshl_b32 s92, s92, 16"); A("s_or_b32 s82, s90, s92"); A("s_mov_b32 s83, s88")
        A("s_getreg_b32 s80, hwreg(HW_REG_XCC_ID)"); A("s_xor_b32 s81, s23, 1")
        for i in range(6): A(f"v_mov_b32 v{20+i}, s{80+i}")
        A("s_lshl_b32 s34, s2, 6"); A("v_mov_b32 v15, 0")
        A("s_mov_b64 exec, 1")
        A("buffer_store_dwordx4 v[20:23], v15, s[52:55], s34 offen offset:32")
        A("buffer_store_dwordx2 v[24:25], v15, s[52:55], s34 offen offset:48")
        if trace:
            A("s_mov_b64 exec, -1")
            A("v_lshlrev_b32 v15, 3, v0"); A("s_lshl_b32 s34, s2, 9"); A("s_add_u32 s34, s34, 131072")
            A("buffer_store_dwordx2 v[30:31], v15, s[52:55], s34 offen")
    A.label("L_end0")
    A("s_endpgm")

    A.label("L_helper")
    def warm_code(tag, lab, endlab, nload):
        A("s_getpc_b64 s[38:39]")
        A.label(f"L_pc{tag}")
        A(f"s_add_u32 s38, s38, {lab}-L_pc{tag}"); A("s_addc_u32 s39, s39, 0")
        A("v_lshlrev_b32 v20, 7, v0")
        for i in range(nload):
            if i: A("v_add_u32 v20, 8192, v20")
            A(f"v_min_u32 v21, {endlab}-{lab}-4, v20")
            A(f"global_load_dword v{22+i}, v21, s[38:39]")
    A("v_and_b32 v11, 3, v0"); A("v_lshlrev_b32 v12, 2, v11"); A(f"v_add_u32 v11, {CTL+16}, v12")
    A("v_mov_b32 v2, 1")
    A("s_lshl_b32 s35, s22, 7"); A(f"s_add_u32 s35, s35, {FLAGS}")
    A("s_lshl_b32 s34, s22, 1"); A("v_mov_b32 v15, s34")
    A("s_mov_b32 s52, s20"); A("s_mov_b32 s53, s21"); A("s_mov_b32 s54, 0x4000000"); A("s_mov_b32 s55, 0x20000")
    A("s_mov_b32 s33, -5")
    A("s_cmp_eq_u32 s23, 0"); A("s_cbranch_scc1 L_hrecv")
    A("s_mov_b64 exec, 0xf")
    A(f"buffer_store_dword v9, v12, s[52:55], s35 offen {xst}")
    A("s_waitcnt vmcnt(0)")
    A("s_mov_b64 exec, 1")
    A("global_store_short v15, v2, s[18:19] sc1")
    A("s_mov_b64 exec, -1")
    A("ds_write_b32 v1, v2 offset:4")
    if NP:
        A(f"s_sub_u32 s57, s24, {pfx}")
        space("p", "L_end2", hsleep)
        A("s_mov_b32 s36, s6"); A("s_mov_b32 s37, s7"); A("s_mov_b32 s38, 0x8000000"); A("s_mov_b32 s39, 0x20000")
        A("s_mov_b32 s40, s8"); A("s_mov_b32 s41, s9"); A("s_mov_b32 s42, 0x8000000"); A("s_mov_b32 s43, 0x20000")
        A("s_lshl_b32 s26, s22, 20"); A(f"s_add_u32 s26, s26, {(128-Ts-NP)*8192}")
        A("v_lshlrev_b32 v3, 7, v0")
        for j in range(NP):
            A(f"buffer_load_dword v{20+(2*j)%8}, v3, s[36:39], s26 offen {pfl}"); A(f"s_waitcnt vmcnt({pfw-1})")
            A(f"buffer_load_dword v{21+(2*j)%8}, v3, s[40:43], s26 offen {pfl}"); A(f"s_waitcnt vmcnt({pfw-1})")
            A("s_add_u32 s26, s26, 8192")
    A("s_waitcnt lgkmcnt(0)")
    A("s_endpgm")
    A.label("L_hrecv")
    A("s_sub_u32 s57, s24, 12")
    space("g", "L_end2", hsleep)
    if warm & 2: warm_code("1", "L_fin", "L_end1", 1)
    A.label("L_hst")
    A("global_load_ushort v14, v15, s[18:19] sc1")
    A("s_sub_u32 s25, s25, 64"); A("s_cbranch_scc1 L_end2")
    A("s_waitcnt vmcnt(0)")
    A("v_readfirstlane_b32 s37, v14"); A("s_cmp_eq_u32 s37, 1"); A("s_cbranch_scc1 L_hst_ok")
    A(f"s_sleep {hsleep}"); A("s_branch L_hst")
    A.label("L_hst_ok")
    A("s_sub_u32 s57, s24, 5")
    space("h", "L_end2", lsleep)
    A.label("L_fpoll")
    A(f"buffer_load_dword v14, v12, s[52:55], s35 offen {xld}")
    A("s_sub_u32 s25, s25, 64"); A("s_cbranch_scc1 L_end2")
    A("s_waitcnt vmcnt(0)")
    A("v_cmp_ne_u32 vcc, 1, v14"); A("s_cbranch_vccz L_fok")
    if fsleep: A(f"s_sleep {fsleep}")
    A("s_branch L_fpoll")
    A.label("L_fok")
    A("v_lshlrev_b32 v3, 4, v0")
    A(f"s_mul_i32 s35, s22, {OB_WG}"); A(f"s_add_u32 s35, s35, {OUTBOX}")
    A(f"s_mov_b32 m0, {MLB}"); A("s_add_u32 s34, s35, 32768")
    for q in range(4): A(f"buffer_load_dwordx4 v3, s[52:55], s34 offen offset:{q*1024} {xld} lds")
    A("s_and_b32 s30, s24, 7"); A("s_lshl_b32 s30, s30, 13")
    for r in range(4):
        for hh in range(2):
            A(f"s_add_u32 m0, s30, {hh*4096}")
            A("s_nop 0")
            for q in range(4): A(f"buffer_load_dwordx4 v3, s[52:55], s35 offen offset:{q*1024} {xld} lds")
            A("s_add_u32 s35, s35, 4096")
        A("s_add_u32 s30, s30, 8192"); A("s_and_b32 s30, s30, 0xffff")
    for k in range(4):
        A(f"v_mov_b32 v8, {k+1}"); A(f"s_waitcnt vmcnt({24-8*k})"); A("ds_write_b32 v1, v8 offset:4")
    if diag == 1:
        A("s_memrealtime s[86:87]"); A("s_waitcnt lgkmcnt(0)")
        A("v_mov_b32 v16, s86"); A("v_mov_b32 v17, s87"); A("s_lshl_b32 s34, s2, 6")
        A("s_mov_b64 exec, 1")
        A("buffer_store_dwordx2 v[16:17], v9, s[52:55], s34 offen offset:56")
    A("s_waitcnt lgkmcnt(0)")
    A.label("L_end2")
    A("s_endpgm")

    A.label("L_consumer")
    vQ, vO, vSA, vSB, vK, vV, vT = 32, 64, 128, 144, 160, 192, 240
    vP = {'A': 224, 'B': 232}
    vM = (4, 6); vL = (5, 7); vAcc = (2, 3); vProgA, vProg, vTmp, vSum = 8, 9, 10, 11
    vKa, vVa = 12, 16
    def Cn(kb, qb): return (24 if kb == 0 else 248) + 4*qb
    sC, sTHR, sL, sNV, sNK, sFloor, sEnd = 's26', 's27', 's28', 's29', 's30', 's31', 's32'
    MF = "v_mfma_f32_16x16x32_bf16"
    if st4: A("s_memrealtime s[64:65]")
    A("v_xor_b32 v29, v2, v3"); A("v_lshlrev_b32 v30, 8, v3")
    A(f"v_lshl_add_u32 v{vKa}, v29, 4, v30")
    for ks in range(1, 4): A(f"v_xor_b32 v{vKa+ks}, {64*ks}, v{vKa}")
    A("v_lshrrev_b32 v29, 2, v0")
    A("v_lshlrev_b32 v30, 8, v29")
    A("v_and_b32 v29, 7, v29"); A("v_lshl_add_u32 v30, v29, 5, v30")
    A("v_and_b32 v29, 3, v0"); A("v_lshl_add_u32 v30, v29, 3, v30")
    A(f"v_add_u32 v{vVa}, {VRING}, v30")
    for db in range(1, 8): A(f"v_xor_b32 v{vVa+db}, {32*db}, v{vVa}")
    for ks in range(4): A(f"v_add_u32 v{vP['A']+ks}, s34, v{vKa+ks}")
    A("s_lshl_b32 s35, s3, 2"); A(f"s_add_u32 s35, s35, {CTL+16}"); A(f"v_mov_b32 v{vProgA}, s35")
    A(f"v_mov_b32 v{vProg}, 0")
    A(f"s_mov_b32 {sC}, {hex(f2u(LOG2E / math.sqrt(128.0)))}")
    A(f"s_mov_b32 {sTHR}, {hex(f2u(thr))}")
    A(f"s_mov_b32 {sL}, 0"); A(f"s_mov_b32 {sFloor}, 0xff800000")
    for qb in range(2):
        A(f"v_mov_b32 v{vM[qb]}, 0"); A(f"v_mov_b32 v{vL[qb]}, 0"); A(f"v_mov_b32 v{vAcc[qb]}, 0x7f800000")
    for i in range(64): A(f"v_mov_b32 v{vO+i}, 0")
    A(f"s_lshl_b32 {sEnd}, s24, 1"); A(f"s_add_u32 {sEnd}, {sEnd}, 4")
    for kb in range(2):
        for i in range(8): A(f"v_mov_b32 v{Cn(kb,0)+i}, 0")
    if st4: A("s_memrealtime s[66:67]")
    A("s_waitcnt vmcnt(0)")
    if st4: A("s_memrealtime s[68:69]")
    for qb in range(2):
        for ks in range(4): A(f"ds_read_b128 {vr(vQ+4*(qb*4+ks),4)}, v{vP['A']+ks} offset:{qb*4096}")
    A("s_cmp_lg_u32 s23, 0"); A("s_cbranch_scc1 L_nomask2")
    A(f"s_mov_b32 s35, {hex(f2u(-1e9 * LOG2E))}")
    for kb in range(2):
        for qb in range(2):
            for i in range(4):
                src = vT + 2*(2*kb+qb) + i//2; d = Cn(kb, qb) + i
                if i % 2 == 0: A(f"v_lshlrev_b32 v{d}, 16, v{src}")
                else: A(f"v_and_b32 v{d}, 0xffff0000, v{src}")
                A(f"v_fma_f32 v{d}, v{d}, -s35, s35")
    A.label("L_nomask2")
    A("s_waitcnt lgkmcnt(0)")
    A(f"ds_write_b32 v{vProgA}, v{vProg}")
    for i in range(32):
        t = vT + 2*(i % 4)
        A(f"v_lshlrev_b32 v{t}, 16, v{vQ+i}"); A(f"v_and_b32 v{t+1}, 0xffff0000, v{vQ+i}")
        A(f"v_mul_f32 v{t}, {sC}, v{t}"); A(f"v_mul_f32 v{t+1}, {sC}, v{t+1}")
        A(f"v_cvt_pk_bf16_f32 v{vQ+i}, v{t}, v{t+1}")

    polls = []
    def wait_L(need):
        n = len(polls)
        body = [f"L_pent{n}:", f"s_cmp_eq_u32 {need}, {sEnd}", "s_cbranch_scc1 L_fin", f"L_poll{n}:", f"ds_read_b32 v{vTmp}, v1", "s_sub_u32 s25, s25, 1", "s_cbranch_scc1 L_end1", "s_waitcnt lgkmcnt(0)",
                f"v_readfirstlane_b32 {sL}, v{vTmp}", f"s_cmp_ge_i32 {sL}, {need}", f"s_cbranch_scc1 L_ok{n}"]
        if csleep: body.append(f"s_sleep {csleep}")
        body.append(f"s_branch L_poll{n}")
        polls.append(body)
        return [f"s_cmp_ge_i32 {sL}, {need}", f"s_cbranch_scc0 L_pent{n}", f"L_ok{n}:"]
    def Kf(ks, kb): return vK + 4*(2*ks + kb)
    def k_reads(slot): return [f"ds_read_b128 {vr(Kf(ks,kb),4)}, v{vKa+ks} offset:{slot*8192+kb*4096}" for ks in range(4) for kb in range(2)]
    def v_reads(slot): return [f"ds_read_b64_tr_b16 {vr(vV+4*db+2*u,2)}, v{vVa+db} offset:{slot*8192+u*4096}" for db in range(8) for u in range(2)]
    def qk(S, zero):
        return [f"{MF} {vr(S+4*(2*kb+qb),4)}, {vr(Kf(ks,kb),4)}, {vr(vQ+4*(qb*4+ks),4)}, {('0' if zero else vr(Cn(kb,qb),4)) if ks == 0 else vr(S+4*(2*kb+qb),4)}"
                for ks in range(4) for kb in range(2) for qb in range(2)]
    def pv(X):
        return [f"{MF} {vr(vO+4*(2*db+qb),4)}, {vr(vV+4*db,4)}, {vr(vP[X]+4*qb,4)}, {vr(vO+4*(2*db+qb),4)}" for db in range(8) for qb in range(2)]
    def softmax(S, X):
        def T(k, e): return vT + 2*(k % 4) + e
        def Sk(k, e): qb = k & 1; jj = k >> 1; return S + 4*(2*(jj >> 1) + qb) + 2*(jj & 1) + e
        def Pk(k): return vP[X] + 4*(k & 1) + (k >> 1)
        E = lambda k: [f"v_exp_f32 v{T(k,e)}, v{Sk(k,e)}" for e in range(2)]
        def AC(k):
            a = vAcc[k & 1]
            c = f"v_cvt_pk_bf16_f32 v{Pk(k)}, v{T(k,0)}, v{T(k,1)}"
            if k < 2: return [f"v_add_f32 v{a}, v{T(k,0)}, v{T(k,1)}", c]
            return [f"v_add_f32 v{a}, v{a}, v{T(k,0)}", c, f"v_add_f32 v{a}, v{a}, v{T(k,1)}"]
        out = E(0)
        for k in range(8):
            if k + 1 < 8: out += E(k+1)
            out += AC(k)
        return out

    if st4: A("s_memrealtime s[70:71]")
    def wait_inline(tag, need):
        A.label(f"L_ip{tag}")
        A([f"ds_read_b32 v{vTmp}, v1", "s_sub_u32 s25, s25, 1", "s_cbranch_scc1 L_end1", "s_waitcnt lgkmcnt(0)",
           f"v_readfirstlane_b32 {sL}, v{vTmp}", f"s_cmp_ge_i32 {sL}, {need}", f"s_cbranch_scc0 L_ip{tag}"])
    wait_inline("a", 2); A(k_reads(0))
    A("s_waitcnt lgkmcnt(0)")
    A(qk(vSA, True))
    A(k_reads(1))
    A(f"s_mov_b32 {sNV}, 4")
    wait_inline("b", 4)
    if diag: A("s_memrealtime s[82:83]"); A("s_memtime s[88:89]"); A("s_waitcnt lgkmcnt(0)")
    stubs = []
    def flt(L):
        ds = [d for d in drop.split(',') if d]
        return [x for x in L if not any(x.startswith(d) for d in ds)]
    def spread(stream, n):
        tot = sum(cost(x) for x in stream); out = [[] for _ in range(n)]; acc = 0
        for x in stream:
            g = min(n - 1, int((acc + cost(x) / 2.0) * n / tot))
            out[g].append(x); acc += cost(x)
        return out
    A(".p2align 3")
    for i in range(NS):
        X, Y = ('A', 'B') if i % 2 == 0 else ('B', 'A')
        Scur, Snext = (vSA, vSB) if X == 'A' else (vSB, vSA)
        A.label(f"L_body{i}")
        B = []
        q = qk(Snext, False); vrd = v_reads(i); kr = k_reads((i + 2) % NS); p = pv(X)
        st = spread(softmax(Scur, X)[nB:] + [f"v_add_f32 v{vSum}, v{vAcc[0]}, v{vAcc[1]}", f"v_cmp_nge_f32 vcc, {sTHR}, v{vSum}"], 14)
        for g in range(14):
            B.append(q[g])
            nv = 2 if g < 2 else 1
            B += vrd[:nv]; vrd = vrd[nv:]
            B += st[g]
        assert not vrd
        B.append(q[14]); B += kr[0:2]
        B.append(q[15]); B.append("s_waitcnt lgkmcnt(6)"); B += kr[2:3]
        if not drop: B.append(f"s_cbranch_vccnz L_stub{i}")
        B.append(f"L_cont{i}:")
        stubs.append([f"L_stub{i}:", f"s_call_b64 s[62:63], L_slow{X}", f"s_branch L_cont{i}"])
        st = spread(softmax(Snext, Y)[:nB], 13)
        w = wait_L(sNV)
        B.append(p[0]); B += kr[3:4]; B.append(f"v_add_f32 v{vL[0]}, v{vL[0]}, v{vAcc[0]}")
        B.append(p[1]); B += kr[4:5]; B.append(f"v_add_f32 v{vL[1]}, v{vL[1]}, v{vAcc[1]}")
        B.append(p[2]); B += kr[5:6]; B.append(f"v_add_u32 v{vProg}, 1, v{vProg}")
        for g in range(3, 16):
            B.append(p[g])
            if g == 3: B += kr[6:7]
            if g == 4: B += kr[7:8]
            if g == 5: B += ["s_waitcnt lgkmcnt(8)", f"ds_write_b32 v{vProgA}, v{vProg}"]
            if g == 12: B.append(f"s_add_u32 {sNV}, {sNV}, 2")
            if g == 13: B.append(w[0])
            if g == 14: B.append("s_waitcnt lgkmcnt(0)")
            B += st[g - 3]
        if i < NS - 1: B += w[1:]
        else:
            n = len(polls) - 1
            B += ["s_cbranch_scc1 L_body0", f"s_branch L_pent{n}"]
            polls[n] = [x.replace(f"L_ok{n}", "L_body0") for x in polls[n]]
        A(flt(B))
    def xreduce(op, regs, tmps):
        for sw in ("v_permlane16_swap_b32", "v_permlane32_swap_b32"):
            for r, t in zip(regs, tmps): A(f"v_mov_b32 v{t}, v{r}")
            A("s_nop 1")
            for r, t in zip(regs, tmps): A(f"{sw} v{t}, v{r}")
            A("s_nop 1")
            for r, t in zip(regs, tmps): A(f"{op} v{r}, v{r}, v{t}")
    A.label("L_fin")
    if diag: A("s_memrealtime s[84:85]"); A("s_memtime s[90:91]"); A("s_waitcnt lgkmcnt(0)")
    A(f"ds_read_b32 v{vTmp}, v1 offset:4")
    A("v_lshlrev_b32 v12, 4, v0")
    A("s_add_u32 s34, s24, s3"); A("s_and_b32 s34, s34, 7"); A("s_lshl_b32 s34, s34, 13")
    A("s_lshl_b32 s35, s3, 10"); A(f"s_add_u32 s35, s35, {MLB}")
    A("v_add_u32 v13, s35, v12"); A("v_add_u32 v14, s34, v12")
    xreduce("v_add_f32", vL, (vT, vT+1))
    A("s_cmp_eq_u32 s23, 0"); A("s_cbranch_scc0 L_send")
    A("s_waitcnt lgkmcnt(0)")
    A(f"v_readfirstlane_b32 s35, v{vTmp}")
    A("s_cmp_gt_u32 s35, s3"); A("s_cbranch_scc0 L_role")
    A.label("L_roleok")
    if st3: A("s_memtime s[64:65]"); A("s_waitcnt lgkmcnt(0)")
    A("ds_read_b128 v[16:19], v13")
    for i in range(8): A(f"ds_read_b128 {vr(vK+4*i,4)}, v14 offset:{i*1024}")
    A("v_and_b32 v24, 15, v0"); A("v_lshrrev_b32 v25, 4, v0"); A("v_lshlrev_b32 v26, 8, v24")
    A("v_lshrrev_b32 v28, 1, v25"); A("v_xor_b32 v28, v28, v24"); A("v_lshl_add_u32 v28, v28, 4, v26")
    A("v_and_b32 v29, 1, v25"); A("v_lshl_add_u32 v28, v29, 3, v28"); A("v_add_u32 v28, s34, v28")
    fa = (20, 22); fb = (128, 130)
    A("s_waitcnt lgkmcnt(8)")
    for qb in range(2):
        A(f"v_max_f32 v{vT+qb}, v{vM[qb]}, v{16+2*qb}")
        A(f"v_sub_f32 v{fa[qb]}, v{vM[qb]}, v{vT+qb}"); A(f"v_sub_f32 v{fb[qb]}, v{16+2*qb}, v{vT+qb}")
        A(f"v_exp_f32 v{fa[qb]}, v{fa[qb]}"); A(f"v_exp_f32 v{fb[qb]}, v{fb[qb]}")
    for qb in range(2):
        A(f"v_mul_f32 v{vT+qb}, v{vL[qb]}, v{fa[qb]}"); A(f"v_fma_f32 v{vT+qb}, v{17+2*qb}, v{fb[qb]}, v{vT+qb}")
    for qb in range(2): A(f"v_rcp_f32 v{vT+qb}, v{vT+qb}")
    A("v_xor_b32 v29, v24, v25"); A("v_lshlrev_b32 v29, 4, v29"); A("v_lshl_add_u32 v29, v25, 8, v29"); A("v_add_u32 v29, s34, v29")
    for qb in range(2):
        A(f"v_mul_f32 v{fa[qb]}, v{fa[qb]}, v{vT+qb}"); A(f"v_mul_f32 v{fb[qb]}, v{fb[qb]}, v{vT+qb}")
        A(f"v_mov_b32 v{fa[qb]+1}, v{fa[qb]}"); A(f"v_mov_b32 v{fb[qb]+1}, v{fb[qb]}")
    for db in range(8): A(f"v_xor_b32 v{144+db}, {32*db}, v28")
    for k in range(4): A(f"v_xor_b32 v{152+k}, {64*k}, v29")
    A("s_mov_b32 s40, s16"); A("s_mov_b32 s41, s17"); A("s_mov_b32 s42, 0x400000"); A("s_mov_b32 s43, 0x20000")
    A("s_add_u32 s35, s33, 4096")
    A("s_waitcnt lgkmcnt(0)")
    def blk(db, qb):
        q = 2*db + qb; u = 132 + 4*(db % 2); o = vP['A'] + 2*db
        r = []
        for e in range(2):
            r += [f"v_lshlrev_b32 v{u+2*e}, 16, v{vK+2*q+e}", f"v_and_b32 v{u+2*e+1}, 0xffff0000, v{vK+2*q+e}"]
        for e in range(2): r.append(f"v_pk_mul_f32 {vr(vO+4*q+2*e,2)}, {vr(vO+4*q+2*e,2)}, {vr(fa[qb],2)}")
        for e in range(2): r.append(f"v_pk_fma_f32 {vr(vO+4*q+2*e,2)}, {vr(u+2*e,2)}, {vr(fb[qb],2)}, {vr(vO+4*q+2*e,2)}")
        r += [f"v_cvt_pk_bf16_f32 v{o}, v{vO+4*q}, v{vO+4*q+1}", f"v_cvt_pk_bf16_f32 v{o+1}, v{vO+4*q+2}, v{vO+4*q+3}"]
        return r
    def wr(qb): return [f"ds_write_b64 v{144+db}, {vr(vP['A']+2*db,2)} offset:{qb*4096}" for db in range(8)]
    def rd(qb): return [f"ds_read_b128 {vr(vV+16*qb+4*k,4)}, v{152+k} offset:{qb*4096+k*1024}" for k in range(4)]
    def stq(qb, k): return f"buffer_store_dwordx4 {vr(vV+16*qb+4*k,4)}, v12, s[40:43], {'s33' if qb == 0 else 's35'} offen offset:{k*1024} {stflags}"
    for db in range(8): A(blk(db, 0))
    A(wr(0)); A(rd(0))
    for db in range(8):
        A(blk(db, 1))
        if db == 3:
            A("s_waitcnt lgkmcnt(0)")
            for k in range(4): A(stq(0, k))
    if st3: A("s_memtime s[66:67]"); A("s_waitcnt lgkmcnt(0)")
    A(wr(1)); A(rd(1))
    for k in range(4):
        A(f"s_waitcnt lgkmcnt({3-k})"); A(stq(1, k))
    if st3: A("s_memtime s[68:69]")
    A.label("L_done")
    if probe and probe[0] == 'C':
        A("s_waitcnt vmcnt(0)"); spin('C')
    if diag == 1:
        A("s_waitcnt vmcnt(0)")
        A("s_memrealtime s[86:87]")
        A("s_cmp_lg_u32 s3, 0"); A("s_cbranch_scc1 L_end1")
        A("s_mov_b32 s44, s20"); A("s_mov_b32 s45, s21"); A("s_mov_b32 s46, 0x4000000"); A("s_mov_b32 s47, 0x20000")
        A("s_waitcnt lgkmcnt(0)")
        if st3:
            A("s_memtime s[70:71]"); A("s_waitcnt lgkmcnt(0)")
            A("s_sub_u32 s70, s70, s68"); A("s_sub_u32 s68, s68, s66"); A("s_sub_u32 s66, s66, s64"); A("s_sub_u32 s64, s64, s90")
            A("v_mov_b32 v24, s64"); A("v_mov_b32 v25, s66"); A("v_mov_b32 v26, s68"); A("v_mov_b32 v27, s70")
        if st4:
            for i in range(4): A(f"s_sub_u32 s{64+2*i}, s{64+2*i}, s80"); A(f"v_mov_b32 v{24+i}, s{64+2*i}")
        A("s_sub_u32 s90, s90, s88")
        for i in range(8): A(f"v_mov_b32 v{16+i}, s{80+i}")
        if not st3 and not st4: A("v_mov_b32 v24, s90")
        A("s_lshl_b32 s34, s2, 6"); A("v_mov_b32 v15, 0")
        A("s_mov_b64 exec, 1")
        A("s_lshl_b32 s35, s2, 4"); A("s_add_u32 s35, s35, 65536")
        A("buffer_store_dwordx4 v[24:27], v15, s[44:47], s35 offen")
        A("buffer_store_dwordx4 v[16:19], v15, s[44:47], s34 offen")
        A("buffer_store_dwordx4 v[20:23], v15, s[44:47], s34 offen offset:16")
    A.label("L_end1")
    A("s_endpgm")
    A.label("L_role")
    A(f"ds_read_b32 v{vTmp}, v1 offset:4"); A("s_sub_u32 s25, s25, 1"); A("s_cbranch_scc1 L_end1"); A("s_waitcnt lgkmcnt(0)")
    A(f"v_readfirstlane_b32 s35, v{vTmp}")
    A("s_cmp_gt_u32 s35, s3"); A("s_cbranch_scc0 L_role")
    A("s_branch L_roleok")
    A.label("L_send")
    A("s_mov_b32 s44, s20"); A("s_mov_b32 s45, s21"); A("s_mov_b32 s46, 0x4000000"); A("s_mov_b32 s47, 0x20000")
    A(f"s_mul_i32 s35, s22, {OB_WG}"); A(f"s_add_u32 s35, s35, {OUTBOX}")
    A("s_lshl_b32 s34, s3, 10"); A("s_add_u32 s34, s34, s35"); A("s_add_u32 s34, s34, 32768")
    A(f"buffer_store_dwordx4 v[4:7], v12, s[44:47], s34 offen {xst}")
    A("s_lshl_b32 s34, s3, 13"); A("s_add_u32 s35, s35, s34")
    for i in range(8):
        for e in range(4): A(f"v_cvt_pk_bf16_f32 v{vK+4*i+e}, v{vO+8*i+2*e}, v{vO+8*i+2*e+1}")
        if i == 4: A(f"s_add_u32 s35, s35, 4096")
        A(f"buffer_store_dwordx4 {vr(vK+4*i,4)}, v12, s[44:47], s35 offen offset:{(i%4)*1024} {xst}")
    A("s_lshl_b32 s35, s22, 7"); A("s_lshl_b32 s34, s3, 2"); A("s_add_u32 s35, s35, s34"); A(f"s_add_u32 s35, s35, {FLAGS}")
    A("v_mov_b32 v14, 1"); A("v_mov_b32 v15, 0")
    A.label("L_sclr")
    A(f"ds_read_b32 v{vTmp}, v1 offset:4"); A("s_sub_u32 s25, s25, 1"); A("s_cbranch_scc1 L_end1"); A("s_waitcnt lgkmcnt(0)")
    A(f"v_readfirstlane_b32 s34, v{vTmp}")
    A("s_cmp_eq_u32 s34, 0"); A("s_cbranch_scc1 L_sclr")
    A("s_waitcnt vmcnt(0)")
    A("s_mov_b64 exec, 1")
    A(f"buffer_store_dword v14, v15, s[44:47], s35 offen {xst}")
    A("s_mov_b64 exec, -1")
    A("s_branch L_done")
    for p in polls: A(p)
    for p in stubs: A(p)
    def slow(X, S, Sn):
        A.label(f"L_slow{X}")
        t = (vT, vT + 1); u = (vT + 2, vT + 3)
        for qb in range(2):
            e = [S + 4*(2*kb + qb) + r for kb in range(2) for r in range(4)]
            A(f"v_max3_f32 v{t[qb]}, v{e[0]}, v{e[1]}, v{e[2]}")
            A(f"v_max3_f32 v{t[qb]}, v{t[qb]}, v{e[3]}, v{e[4]}")
            A(f"v_max3_f32 v{t[qb]}, v{t[qb]}, v{e[5]}, v{e[6]}")
            A(f"v_max_f32 v{t[qb]}, v{t[qb]}, v{e[7]}")
        xreduce("v_max_f32", t, u)
        for qb in range(2):
            A(f"v_max_f32 v{t[qb]}, {sFloor}, v{t[qb]}")
            A(f"v_max_f32 v{u[qb]}, 0, v{t[qb]}")
            A(f"v_exp_f32 v{u[qb]}, -v{u[qb]}")
            A(f"v_add_f32 v{vM[qb]}, v{vM[qb]}, v{t[qb]}")
        A(f"s_mov_b32 {sFloor}, 0")
        for i in range(16):
            A(f"v_sub_f32 v{S+i}, v{S+i}, v{t[(i//4)&1]}"); A(f"v_sub_f32 v{Sn+i}, v{Sn+i}, v{t[(i//4)&1]}")
        for kb in range(2):
            for qb in range(2):
                for r in range(4): A(f"v_sub_f32 v{Cn(kb,qb)+r}, 0, v{vM[qb]}")
        for qb in range(2): A(f"v_mul_f32 v{vL[qb]}, v{vL[qb]}, v{u[qb]}")
        for i in range(64): A(f"v_mul_f32 v{vO+i}, v{vO+i}, v{u[(i//4)&1]}")
        A(softmax(S, X))
        A("s_setpc_b64 s[62:63]")
    slow('A', vSA, vSB)
    slow('B', vSB, vSA)
    A.label("L_codeend")
    A('.section .rodata,"a"'); A(".p2align 6")
    A(f".amdhsa_kernel {KNAME}")
    A(".amdhsa_next_free_vgpr 256"); A(".amdhsa_next_free_sgpr 96"); A(".amdhsa_accum_offset 256")
    A(".amdhsa_group_segment_fixed_size 0"); A(".amdhsa_kernarg_size 72"); A(".amdhsa_user_sgpr_count 2")
    A(".amdhsa_user_sgpr_kernarg_segment_ptr 1"); A(".amdhsa_system_sgpr_workgroup_id_x 1")
    A(".end_amdhsa_kernel")
    return A.text()

if __name__ == '__main__':
    kw = eval("dict(%s)" % (sys.argv[2] if len(sys.argv) > 2 else ""))
    open(sys.argv[1], 'w').write(gen(**kw))
```

```python
import sys, math, struct
KNAME = "standalone__tree_speculative_verify_tree_attention_over_candidate_token_tree__sampling_kernel"
def f2u(x): return struct.unpack('<I', struct.pack('<f', x))[0]

class Asm:
    def __init__(self): self.L = []
    def __call__(self, s):
        if isinstance(s, (list, tuple)):
            for x in s: self(x)
        else: self.L.append(s)
    def label(self, s): self.L.append(s + ":")
    def text(self): return "\n".join(("    " + l if not l.endswith(":") and not l.startswith(";") and not l.startswith(".") else l) for l in self.L) + "\n"

def cost(x):
    if x.endswith(':'): return 0
    return 2 if x.startswith('v_exp') else 1

HEADER = """; Tree-attention verify (GQA, B=16 Hq=32 Hkv=8 T=32 C=4096 D=128), bf16.
"""

def gen(Wa=20, Wb=18, W2=32, Sb=34, S2=60, Ts=61, wgran=1,
        ldflags='nt', qflags='', stflags='sc1', xst='sc1', xld='sc1', diag=0, thr=1024.0,
        lsleep=1, csleep=1, fsleep=1, hsleep=4, drop='', probe=None, trace=0, ramp=(44, 1, 70, 9), nB=20, warm=1, st2=0, st3=0, W0=24, NP=0, pfx=3, pfl='', pfw=4, st4=0, cap=8, S3=200, rend=96, Hcap=30, dip=None, nost=0, nold=0, noout=0, phase=1):
    if probe: diag = 2
    A = Asm()
    NS = 8
    VRING = NS * 8192
    MLB = 2 * NS * 8192
    CTL = MLB + 4096
    LDS = CTL + 64
    OUTBOX = 1 << 20
    OB_WG = 4 * 8192 + 4096
    FLAGS = 32 << 20
    SPIN = 1 << 22
    LOG2E = math.log2(math.e)
    def vr(b, n=1): return f"v{b}" if n == 1 else f"v[{b}:{b+n-1}]"
    for l in HEADER.strip().split("\n"): A(l)
    A(f"; @launch grid=(256,1,1) block=(384,1,1) lds={LDS}")
    A('.amdgcn_target "amdgcn-amd-amdhsa--gfx950"')
    A(".text"); A(f".globl {KNAME}"); A(".p2align 8"); A(f".type {KNAME},@function"); A.label(KNAME)
    A("s_cmp_ge_u32 s2, 256"); A("s_cbranch_scc1 L_end0")
    if diag: A("s_memrealtime s[80:81]")
    A("s_load_dwordx16 s[4:19], s[0:1], 0")
    A("s_load_dwordx2 s[20:21], s[0:1], 64")
    A("v_lshrrev_b32 v1, 6, v0")
    A("v_and_b32 v0, 63, v0")
    A("v_readfirstlane_b32 s3, v1")
    if warm & 1:
        A("s_cmp_lg_u32 s3, 1"); A("s_cbranch_scc1 L_nowarm")
        A("s_getpc_b64 s[38:39]")
        A.label("L_pc0")
        A("s_bfe_u32 s36, s2, 0x10003"); A("s_lshl_b32 s36, s36, 13")
        A("v_lshl_add_u32 v20, v0, 7, s36"); A("v_min_u32 v20, L_codeend-L_pc0-4, v20")
        A("global_load_dword v22, v20, s[38:39]")
        A.label("L_nowarm")
    A("v_lshrrev_b32 v2, 4, v0"); A("v_and_b32 v3, 15, v0")
    A(f"v_mov_b32 v1, {CTL}")
    A("v_and_b32 v8, 12, v3"); A("v_cmp_eq_u32 vcc, 4, v8"); A("v_lshl_add_u32 v10, v3, 2, v1"); A("v_mov_b32 v9, 0")
    A("v_cndmask_b32 v8, 0, -5, vcc")
    A("ds_write_b32 v10, v8")
    A("v_xor_b32 v4, v3, v2"); A("v_lshlrev_b32 v4, 4, v4")
    A("v_lshl_add_u32 v4, v2, 8, v4")
    for k in range(1, 4): A(f"v_xor_b32 v{4+k}, {64*k}, v4")
    A("s_and_b32 s22, s2, 7"); A("s_lshr_b32 s23, s2, 4"); A("s_lshl_b32 s23, s23, 3"); A("s_or_b32 s22, s22, s23")
    A("s_bfe_u32 s23, s2, 0x10003")
    A("s_lshl_b32 s2, s22, 1"); A("s_or_b32 s2, s2, s23")
    A(f"s_mov_b32 s25, {SPIN}")
    A("s_mov_b32 s39, 0x20000")
    A("s_cmp_eq_u32 s23, 0")
    A(f"s_cselect_b32 s24, {129-Ts}, {Ts}")
    A("s_cmp_eq_u32 s3, 0"); A("s_cbranch_scc1 L_loader")
    A("s_cmp_eq_u32 s3, 1"); A("s_cbranch_scc1 L_bar1")
    A("s_sub_u32 s3, s3, 2")
    A("s_lshl_b32 s33, s22, 2"); A("s_add_u32 s33, s33, s3"); A("s_lshl_b32 s33, s33, 13")
    A("s_add_u32 s35, s33, 4096")
    A("s_lshl_b32 s34, s3, 13"); A("s_add_u32 s34, s34, 32768")
    A("s_mov_b32 s38, 0x400000"); A("s_mov_b32 m0, s34")
    A("s_waitcnt lgkmcnt(0)")
    A("s_mov_b32 s36, s4"); A("s_mov_b32 s37, s5")
    for q in range(8):
        if q == 4: A("s_add_u32 m0, s34, 4096"); A("s_nop 0")
        A(f"buffer_load_dwordx4 v{4+(q&3)}, s[36:39], {'s33' if q < 4 else 's35'} offen offset:{(q&3)*1024} {qflags} lds")
    A("s_cmp_lg_u32 s23, 0"); A("s_cbranch_scc1 L_nomask")
    A("s_mov_b32 s40, s14"); A("s_mov_b32 s41, s15"); A("s_mov_b32 s42, 0x8000"); A("s_mov_b32 s43, 0x20000")
    A("v_lshlrev_b32 v28, 6, v3"); A("v_lshl_add_u32 v28, v2, 3, v28")
    A("s_lshr_b32 s35, s22, 3"); A("s_lshl_b32 s35, s35, 11")
    for kb in range(2):
        for qb in range(2):
            A(f"buffer_load_dwordx2 {vr(240+2*(2*kb+qb),2)}, v28, s[40:43], s35 offen offset:{1024*qb+32*kb}")
    A.label("L_nomask")
    A("s_barrier")
    A("s_branch L_consumer")
    A.label("L_bar1")
    A("s_waitcnt lgkmcnt(0)")
    A("s_barrier")
    A("s_branch L_helper")

    A.label("L_loader")
    A("s_setprio 3")
    A("s_lshl_b32 s26, s22, 20"); A(f"s_mul_i32 s27, s23, {(128-Ts)*8192}"); A("s_add_u32 s26, s26, s27")
    A("s_mov_b32 s38, 0x8000000")
    A("s_mov_b32 s30, 0")
    A("s_mov_b32 s32, 0")
    A("s_waitcnt lgkmcnt(0)")
    if st2 == 1: A("s_memrealtime s[90:91]")
    A("s_mov_b32 s36, s6"); A("s_mov_b32 s37, s7")
    issued = [0]
    def publish(D):
        A(f"s_sub_u32 s68, s32, {D}")
        A("v_mov_b32 v8, s68"); A("ds_write_b32 v1, v8")
    def step(srd, soff, slot, isK, W, startup=False):
        qstar = (W - 2) % 8
        for q in range(8):
            if q == 0: A(f"s_mov_b32 m0, {slot}"); A(f"s_add_u32 s34, {soff}, 4096")
            if q == 4: A(f"s_add_u32 m0, {slot}, 4096"); A("s_nop 0")
            v = 4 + (q & 3) if isK else 17 + (q & 1)
            A(f"buffer_load_dwordx4 v{v}, {srd}, {soff if q < 4 else 's34'} offen offset:{(q&3)*1024} {ldflags} lds")
            issued[0] += 1
            if not (startup and issued[0] < W):
                A(f"s_waitcnt vmcnt({W-1})")
                if q == qstar: publish((W - 2) // 8)
        A("s_add_u32 s32, s32, 1")
        A(f"s_add_u32 {slot}, {slot}, 8192")
        if not startup:
            A(f"s_and_b32 {slot}, {slot}, 0xffff")
            if not isK: A(f"s_bitset1_b32 {slot}, 16")
    step("s[36:39]", "s26", "s30", True, W0, True)
    A("s_barrier")
    A("s_mov_b32 s29, s26")
    A("s_add_u32 s26, s26, 8192")
    A("s_lshl_b32 s27, s22, 13")
    A("s_mov_b32 s47, 0x20000"); A("s_mov_b32 s51, 0x20000")
    A("s_cmp_eq_u32 s23, 0")
    A("s_cselect_b32 s46, 0x100000, s38"); A("s_cselect_b32 s50, 0x100000, s38")
    A("s_cselect_b32 s44, s10, s6"); A("s_cselect_b32 s45, s11, s7")
    A("s_cselect_b32 s48, s12, s8"); A("s_cselect_b32 s49, s13, s9")
    A("s_cselect_b32 s27, s27, s26")
    A("s_cselect_b32 s28, 0, 8192")
    step("s[44:47]", "s27", "s30", True, W0, True)
    A("v_lshlrev_b32 v17, 1, v2"); A("v_xor_b32 v17, v3, v17"); A("v_lshlrev_b32 v17, 4, v17")
    A("v_lshl_add_u32 v17, v2, 8, v17")
    A("v_xor_b32 v18, 128, v17")
    A("s_mov_b32 s40, s8"); A("s_mov_b32 s41, s9"); A("s_mov_b32 s42, 0x8000000"); A("s_mov_b32 s43, 0x20000")
    A(f"s_mov_b32 s31, {VRING}")
    if ramp:
        A(f"s_mov_b32 s65, {2*ramp[0]}")
        if phase: A("s_mul_i32 s64, s2, 79"); A("s_and_b32 s64, s64, 127"); A("s_or_b32 s64, s64, 256")
        else: A(f"s_mov_b32 s64, {4*64}")
    A("s_add_u32 s26, s26, s28")
    step("s[40:43]", "s29", "s31", False, W0, True)
    if st2 == 1: A("s_memrealtime s[92:93]"); A("s_waitcnt vmcnt(16)")
    if diag: A("s_memrealtime s[88:89]")
    A("s_mov_b32 s29, s26")
    step("s[36:39]", "s26", "s30", True, W0, True); A("s_add_u32 s26, s26, 8192")
    step("s[48:51]", "s27", "s31", False, W0, True)
    if trace: A("v_mov_b32 v30, 0"); A("v_mov_b32 v31, 0")
    A("v_and_b32 v11, 3, v0"); A("v_lshlrev_b32 v12, 2, v11"); A(f"v_add_u32 v11, {CTL+16}, v12")
    A("s_mov_b32 s56, 2")
    A("v_mov_b32 v13, -4")
    def space(tag, endl, sl):
        A("s_cmp_ge_i32 s33, s57"); A(f"s_cbranch_scc1 L_space{tag}")
        A("v_mov_b32 v13, s57")
        A.label(f"L_spoll{tag}")
        A("ds_read_b32 v14, v11"); A("s_sub_u32 s25, s25, 1"); A(f"s_cbranch_scc1 {endl}"); A("s_waitcnt lgkmcnt(0)")
        A("v_cmp_lt_i32 vcc, v14, v13"); A(f"s_cbranch_vccz L_sok{tag}")
        if sl: A(f"s_sleep {sl}")
        A(f"s_branch L_spoll{tag}")
        A.label(f"L_sok{tag}")
        A("v_readlane_b32 s33, v14, 0"); A("v_readlane_b32 s58, v14, 1"); A("v_readlane_b32 s59, v14, 2"); A("v_readlane_b32 s60, v14, 3")
        A("s_min_i32 s33, s33, s58"); A("s_min_i32 s59, s59, s60"); A("s_min_i32 s33, s33, s59")
        A.label(f"L_space{tag}")
    lpolls = []
    def unit(tag, W, use_ramp, limit, gran):
        ex = [[] for _ in range(17)]
        n = next(n for n in range(16) if (n + 1) % gran == 0 and (8 + n + 2 - W) % 16 < gran)
        c = (8 + n + 2 - W) // 16 * 2
        pub = [f"s_lshl_b32 s68, s56, 1", f"s_add_u32 s68, s68, {c}"]
        if use_ramp:
            r0, k, rmax, lagx = ramp
            pub += ["s_cmp_gt_i32 s68, 4", "s_cselect_b32 s66, s65, 0", f"s_cselect_b32 s67, {4*k}, 0",
                    "s_add_u32 s64, s64, s66", "s_add_u32 s65, s65, s67", f"s_min_u32 s65, s65, {2*rmax}"]
            if Hcap:
                pub += ["v_readfirstlane_b32 s69, v14", "s_max_i32 s69, s69, 0", "s_lshl_b32 s69, s69, 7", f"s_add_u32 s69, s69, {int(cap*64)}",
                        f"s_cmp_lt_u32 s56, {Hcap//2}", "s_cselect_b32 s69, s69, s64", "s_cmp_gt_i32 s64, s69", "s_cselect_b32 s69, 128, 0", "s_sub_u32 s64, s64, s69"]
            pub += ["s_lshl_b32 s67, s56, 7", f"s_sub_u32 s67, s67, {(lagx-1)*64}", "s_max_i32 s64, s64, s67",
                    "s_lshr_b32 s66, s64, 6", "s_min_i32 s68, s66, s68"]
        pub += ["v_mov_b32 v8, s68"]
        assert n < 14 and (tag != 'c' or n + 1 < 8), n
        if use_ramp and Hcap and n >= 1:
            ex[max(n - 2, 0)] += ["ds_read_b32 v14, v11"]; pub = ["s_waitcnt lgkmcnt(0)"] + pub
        ex[n] += pub
        ex[n + 1] += ["ds_write_b32 v1, v8"]
        ex[6] += ["s_add_u32 s26, s26, 8192", "s_add_u32 s30, s30, 8192", "s_and_b32 s30, s30, 0xffff"]
        ex[13] += ["ds_read_b32 v14, v11"]
        ex[14] += ["s_add_u32 s29, s29, 8192", "s_add_u32 s31, s31, 8192", "s_and_b32 s31, s31, 0xffff", "s_bitset1_b32 s31, 16", "s_add_u32 s56, s56, 1"]
        if trace:
            ex[1] += ["s_memrealtime s[70:71]", "s_memtime s[72:73]"]
            ex[14] += ["s_waitcnt lgkmcnt(0)", "s_sub_u32 s74, s56, 2", "s_min_u32 s74, s74, 63", "s_nop 3", "v_writelane_b32 v30, s70, s74"[:0] or "s_nop 0"]
        ex[15] += ["s_waitcnt lgkmcnt(0)", "v_cmp_lt_i32 vcc, v14, v13", "v_add_u32 v13, 1, v13"]
        A.label(f"L_unit{tag}")
        for q in range(16):
            isK = q < 8; slot = "s30" if isK else "s31"; soff = "s26" if isK else "s29"
            if q == 8: A.label(f"L_unitV{tag}")
            if q % 8 == 0: A(f"s_mov_b32 m0, {slot}"); A(f"s_add_u32 s34, {soff}, 4096")
            if q % 8 == 4: A(f"s_add_u32 m0, {slot}, 4096"); A("s_nop 0")
            v = 4 + (q & 3) if isK else 17 + (q & 1)
            A(f"buffer_load_dwordx4 v{v}, {'s[36:39]' if isK else 's[40:43]'}, {soff if q % 8 < 4 else 's34'} offen offset:{(q&3)*1024} {ldflags} lds")
            A(ex[q])
            if q == 15:
                if trace: A("s_mov_b32 m0, s74"); A("v_writelane_b32 v30, s70, m0"); A("v_writelane_b32 v31, s72, m0")
                A(f"s_cbranch_vccnz L_lp{tag}"); A.label(f"L_lpok{tag}")
                A(f"s_cmp_lt_u32 s56, {limit}")
            if (q + 1) % gran == 0: A(f"s_waitcnt vmcnt({W-1})")
        A(f"s_cbranch_scc1 L_unit{tag}")
        lpolls.append([f"L_lp{tag}:", "v_subrev_u32 v15, 1, v13", f"L_lq{tag}:"] + ([f"s_sleep {lsleep}"] if lsleep else []) +
                      ["ds_read_b32 v14, v11", "s_sub_u32 s25, s25, 1", "s_cbranch_scc1 L_end0", "s_waitcnt lgkmcnt(0)",
                       "v_cmp_lt_i32 vcc, v14, v15", f"s_cbranch_vccnz L_lq{tag}", f"s_branch L_lpok{tag}"])
    A("s_sub_u32 s57, s24, 1")
    A(f"s_min_u32 s58, s57, {S2}")
    if ramp: unit("a", Wa, True, Sb, 1)
    unit("b", Wb, False, "s58", 1)
    A("s_cmp_lt_u32 s56, s57"); A("s_cbranch_scc0 L_unitVc")
    unit("c", W2, False, "s57", wgran)
    A("s_cmp_eq_u32 s56, s57"); A("s_cbranch_scc1 L_unitVc")
    A("s_lshl_b32 s32, s24, 1")
    if diag: A("s_memrealtime s[82:83]")
    for r in range(4, 0, -1):
        if r == 3: continue
        A(f"s_sub_u32 s68, s32, {r if r > 1 else 0}")
        A("v_mov_b32 v8, s68")
        A(f"s_waitcnt vmcnt({8*r})")
        A("ds_write_b32 v1, v8")
    A("s_add_u32 s68, s32, 2")
    A("v_mov_b32 v8, s68")
    A("s_waitcnt vmcnt(0)")
    A("ds_write_b32 v1, v8")
    if diag: A("s_memrealtime s[84:85]")
    A("s_waitcnt lgkmcnt(0)")
    def spin(tag):
        who, base, reg, mult = probe[:4]
        if len(probe) > 4: A(f"s_cmp_lg_u32 s2, {probe[4]}"); A(f"s_cbranch_scc1 L_spinx{tag}")
        A("s_memrealtime s[86:87]"); A("s_waitcnt lgkmcnt(0)")
        A(f"s_sub_u32 s94, s{reg}, s80"); A(f"s_mul_i32 s94, s94, {mult}"); A(f"s_add_u32 s94, s94, {base*100}")
        A("s_min_u32 s94, s94, 50000")
        A.label(f"L_spin{tag}")
        A("s_sleep 2"); A("s_memrealtime s[78:79]"); A("s_waitcnt lgkmcnt(0)")
        A("s_sub_u32 s78, s78, s80"); A("s_cmp_lt_u32 s78, s94"); A(f"s_cbranch_scc1 L_spin{tag}")
        A.label(f"L_spinx{tag}")
    if probe and probe[0] == 'L': spin('L')
    if diag == 1:
        A("s_mov_b32 s52, s20"); A("s_mov_b32 s53, s21"); A("s_mov_b32 s54, 0x4000000"); A("s_mov_b32 s55, 0x20000")
        if st2:
            A("s_sub_u32 s90, s90, s80"); A("s_sub_u32 s92, s92, s80"); A("s_sub_u32 s88, s88, s80")
            A("s_lshl_b32 s92, s92, 16"); A("s_or_b32 s82, s90, s92"); A("s_mov_b32 s83, s88")
        A("s_getreg_b32 s80, hwreg(HW_REG_XCC_ID)"); A("s_xor_b32 s81, s23, 1")
        for i in range(6): A(f"v_mov_b32 v{20+i}, s{80+i}")
        A("s_lshl_b32 s34, s2, 6"); A("v_mov_b32 v15, 0")
        A("s_mov_b64 exec, 1")
        A("buffer_store_dwordx4 v[20:23], v15, s[52:55], s34 offen offset:32")
        A("buffer_store_dwordx2 v[24:25], v15, s[52:55], s34 offen offset:48")
        if trace:
            A("s_mov_b64 exec, -1")
            A("v_lshlrev_b32 v15, 3, v0"); A("s_lshl_b32 s34, s2, 9"); A("s_add_u32 s34, s34, 131072")
            A("buffer_store_dwordx2 v[30:31], v15, s[52:55], s34 offen")
    A.label("L_end0")
    A("s_endpgm")
    for p in lpolls: A(p)

    A.label("L_helper")
    def warm_code(tag, lab, endlab, nload):
        A("s_getpc_b64 s[38:39]")
        A.label(f"L_pc{tag}")
        A(f"s_add_u32 s38, s38, {lab}-L_pc{tag}"); A("s_addc_u32 s39, s39, 0")
        A("v_lshlrev_b32 v20, 7, v0")
        for i in range(nload):
            if i: A("v_add_u32 v20, 8192, v20")
            A(f"v_min_u32 v21, {endlab}-{lab}-4, v20")
            A(f"global_load_dword v{22+i}, v21, s[38:39]")
    A("v_and_b32 v11, 3, v0"); A("v_lshlrev_b32 v12, 2, v11"); A(f"v_add_u32 v11, {CTL+16}, v12")
    A("v_mov_b32 v2, 1")
    A("s_lshl_b32 s35, s22, 7"); A(f"s_add_u32 s35, s35, {FLAGS}")
    A("s_lshl_b32 s34, s22, 1"); A("v_mov_b32 v15, s34")
    A("s_mov_b32 s52, s20"); A("s_mov_b32 s53, s21"); A("s_mov_b32 s54, 0x4000000"); A("s_mov_b32 s55, 0x20000")
    A("s_mov_b32 s33, -5")
    A("s_cmp_eq_u32 s23, 0"); A("s_cbranch_scc1 L_hrecv")
    A("s_mov_b64 exec, 0xf")
    A(f"buffer_store_dword v9, v12, s[52:55], s35 offen {xst}")
    A("s_waitcnt vmcnt(0)")
    A("s_mov_b64 exec, 1")
    A("global_store_short v15, v2, s[18:19] sc1")
    A("s_mov_b64 exec, -1")
    A("ds_write_b32 v1, v2 offset:4")
    if NP:
        A(f"s_sub_u32 s57, s24, {pfx}")
        space("p", "L_end2", hsleep)
        A("s_mov_b32 s36, s6"); A("s_mov_b32 s37, s7"); A("s_mov_b32 s38, 0x8000000"); A("s_mov_b32 s39, 0x20000")
        A("s_mov_b32 s40, s8"); A("s_mov_b32 s41, s9"); A("s_mov_b32 s42, 0x8000000"); A("s_mov_b32 s43, 0x20000")
        A("s_lshl_b32 s26, s22, 20"); A(f"s_add_u32 s26, s26, {(128-Ts-NP)*8192}")
        A("v_lshlrev_b32 v3, 7, v0")
        for j in range(NP):
            A(f"buffer_load_dword v{20+(2*j)%8}, v3, s[36:39], s26 offen {pfl}"); A(f"s_waitcnt vmcnt({pfw-1})")
            A(f"buffer_load_dword v{21+(2*j)%8}, v3, s[40:43], s26 offen {pfl}"); A(f"s_waitcnt vmcnt({pfw-1})")
            A("s_add_u32 s26, s26, 8192")
    A("s_waitcnt lgkmcnt(0)")
    A("s_endpgm")
    A.label("L_hrecv")
    A("s_sub_u32 s57, s24, 12")
    space("g", "L_end2", hsleep)
    if warm & 2: warm_code("1", "L_fin", "L_end1", 1)
    A.label("L_hst")
    A("global_load_ushort v14, v15, s[18:19] sc1")
    A("s_sub_u32 s25, s25, 64"); A("s_cbranch_scc1 L_end2")
    A("s_waitcnt vmcnt(0)")
    A("v_readfirstlane_b32 s37, v14"); A("s_cmp_eq_u32 s37, 1"); A("s_cbranch_scc1 L_hst_ok")
    A(f"s_sleep {hsleep}"); A("s_branch L_hst")
    A.label("L_hst_ok")
    A("s_sub_u32 s57, s24, 5")
    space("h", "L_end2", lsleep)
    A.label("L_fpoll")
    A(f"buffer_load_dword v14, v12, s[52:55], s35 offen {xld}")
    A("s_sub_u32 s25, s25, 64"); A("s_cbranch_scc1 L_end2")
    A("s_waitcnt vmcnt(0)")
    A("v_cmp_ne_u32 vcc, 1, v14"); A("s_cbranch_vccz L_fok")
    if fsleep: A(f"s_sleep {fsleep}")
    A("s_branch L_fpoll")
    A.label("L_fok")
    A("v_lshlrev_b32 v3, 4, v0")
    A(f"s_mul_i32 s35, s22, {OB_WG}"); A(f"s_add_u32 s35, s35, {OUTBOX}")
    A(f"s_mov_b32 m0, {MLB}"); A("s_add_u32 s34, s35, 32768")
    for q in range(4): A(f"buffer_load_dwordx4 v3, s[52:55], s34 offen offset:{q*1024} {xld} lds")
    A("s_and_b32 s30, s24, 7"); A("s_lshl_b32 s30, s30, 13")
    for r in range(4):
        for hh in range(2):
            A(f"s_add_u32 m0, s30, {hh*4096}")
            A("s_nop 0")
            for q in range(4):
                if not nold: A(f"buffer_load_dwordx4 v3, s[52:55], s35 offen offset:{q*1024} {xld} lds")
            A("s_add_u32 s35, s35, 4096")
        A("s_add_u32 s30, s30, 8192"); A("s_and_b32 s30, s30, 0xffff")
    for k in range(4):
        A(f"v_mov_b32 v8, {k+1}"); A(f"s_waitcnt vmcnt({24-8*k})"); A("ds_write_b32 v1, v8 offset:4")
    if diag == 1:
        A("s_memrealtime s[86:87]"); A("s_waitcnt lgkmcnt(0)")
        A("v_mov_b32 v16, s86"); A("v_mov_b32 v17, s87"); A("s_lshl_b32 s34, s2, 6")
        A("s_mov_b64 exec, 1")
        A("buffer_store_dwordx2 v[16:17], v9, s[52:55], s34 offen offset:56")
    A("s_waitcnt lgkmcnt(0)")
    A.label("L_end2")
    A("s_endpgm")

    A.label("L_consumer")
    vQ, vO, vSA, vSB, vK, vV, vT = 32, 64, 128, 144, 160, 192, 240
    vP = {'A': 224, 'B': 232}
    vM = (4, 6); vL = (5, 7); vAcc = (2, 3); vProgA, vProg, vTmp, vSum = 8, 9, 10, 11
    vKa, vVa = 12, 16
    def Cn(kb, qb): return (24 if kb == 0 else 248) + 4*qb
    sC, sTHR, sL, sNV, sNK, sFloor, sEnd = 's26', 's27', 's28', 's29', 's30', 's31', 's32'
    MF = "v_mfma_f32_16x16x32_bf16"
    if st4: A("s_memrealtime s[64:65]")
    A("v_xor_b32 v29, v2, v3"); A("v_lshlrev_b32 v30, 8, v3")
    A(f"v_lshl_add_u32 v{vKa}, v29, 4, v30")
    for ks in range(1, 4): A(f"v_xor_b32 v{vKa+ks}, {64*ks}, v{vKa}")
    A("v_lshrrev_b32 v29, 2, v0")
    A("v_lshlrev_b32 v30, 8, v29")
    A("v_and_b32 v29, 7, v29"); A("v_lshl_add_u32 v30, v29, 5, v30")
    A("v_and_b32 v29, 3, v0"); A("v_lshl_add_u32 v30, v29, 3, v30")
    A(f"v_add_u32 v{vVa}, {VRING}, v30")
    for db in range(1, 8): A(f"v_xor_b32 v{vVa+db}, {32*db}, v{vVa}")
    for ks in range(4): A(f"v_add_u32 v{vP['A']+ks}, s34, v{vKa+ks}")
    A("s_lshl_b32 s35, s3, 2"); A(f"s_add_u32 s35, s35, {CTL+16}"); A(f"v_mov_b32 v{vProgA}, s35")
    A(f"v_mov_b32 v{vProg}, 0")
    A(f"s_mov_b32 {sC}, {hex(f2u(LOG2E / math.sqrt(128.0)))}")
    A(f"s_mov_b32 {sTHR}, {hex(f2u(thr))}")
    A(f"s_mov_b32 {sL}, 0"); A(f"s_mov_b32 {sFloor}, 0xff800000")
    for qb in range(2):
        A(f"v_mov_b32 v{vM[qb]}, 0"); A(f"v_mov_b32 v{vL[qb]}, 0"); A(f"v_mov_b32 v{vAcc[qb]}, 0x7f800000")
    for i in range(64): A(f"v_mov_b32 v{vO+i}, 0")
    A(f"s_lshl_b32 {sEnd}, s24, 1"); A(f"s_add_u32 {sEnd}, {sEnd}, 4")
    for kb in range(2):
        for i in range(8): A(f"v_mov_b32 v{Cn(kb,0)+i}, 0")
    if st4: A("s_memrealtime s[66:67]")
    A("s_waitcnt vmcnt(0)")
    if st4: A("s_memrealtime s[68:69]")
    for qb in range(2):
        for ks in range(4): A(f"ds_read_b128 {vr(vQ+4*(qb*4+ks),4)}, v{vP['A']+ks} offset:{qb*4096}")
    A("s_cmp_lg_u32 s23, 0"); A("s_cbranch_scc1 L_nomask2")
    A(f"s_mov_b32 s35, {hex(f2u(-1e9 * LOG2E))}")
    for kb in range(2):
        for qb in range(2):
            for i in range(4):
                src = vT + 2*(2*kb+qb) + i//2; d = Cn(kb, qb) + i
                if i % 2 == 0: A(f"v_lshlrev_b32 v{d}, 16, v{src}")
                else: A(f"v_and_b32 v{d}, 0xffff0000, v{src}")
                A(f"v_fma_f32 v{d}, v{d}, -s35, s35")
    A.label("L_nomask2")
    A("s_waitcnt lgkmcnt(0)")
    A(f"ds_write_b32 v{vProgA}, v{vProg}")
    for i in range(32):
        t = vT + 2*(i % 4)
        A(f"v_lshlrev_b32 v{t}, 16, v{vQ+i}"); A(f"v_and_b32 v{t+1}, 0xffff0000, v{vQ+i}")
        A(f"v_mul_f32 v{t}, {sC}, v{t}"); A(f"v_mul_f32 v{t+1}, {sC}, v{t+1}")
        A(f"v_cvt_pk_bf16_f32 v{vQ+i}, v{t}, v{t+1}")

    polls = []
    def wait_L(need):
        n = len(polls)
        body = [f"L_pent{n}:", f"s_cmp_eq_u32 {need}, {sEnd}", "s_cbranch_scc1 L_fin", f"L_poll{n}:", f"ds_read_b32 v{vTmp}, v1", "s_sub_u32 s25, s25, 1", "s_cbranch_scc1 L_end1", "s_waitcnt lgkmcnt(0)",
                f"v_readfirstlane_b32 {sL}, v{vTmp}", f"s_cmp_ge_i32 {sL}, {need}", f"s_cbranch_scc1 L_ok{n}"]
        if csleep: body.append(f"s_sleep {csleep}")
        body.append(f"s_branch L_poll{n}")
        polls.append(body)
        return [f"s_cmp_ge_i32 {sL}, {need}", f"s_cbranch_scc0 L_pent{n}", f"L_ok{n}:"]
    def Kf(ks, kb): return vK + 4*(2*ks + kb)
    def k_reads(slot): return [f"ds_read_b128 {vr(Kf(ks,kb),4)}, v{vKa+ks} offset:{slot*8192+kb*4096}" for ks in range(4) for kb in range(2)]
    def v_reads(slot): return [f"ds_read_b64_tr_b16 {vr(vV+4*db+2*u,2)}, v{vVa+db} offset:{slot*8192+u*4096}" for db in range(8) for u in range(2)]
    def qk(S, zero):
        return [f"{MF} {vr(S+4*(2*kb+qb),4)}, {vr(Kf(ks,kb),4)}, {vr(vQ+4*(qb*4+ks),4)}, {('0' if zero else vr(Cn(kb,qb),4)) if ks == 0 else vr(S+4*(2*kb+qb),4)}"
                for ks in range(4) for kb in range(2) for qb in range(2)]
    def pv(X):
        return [f"{MF} {vr(vO+4*(2*db+qb),4)}, {vr(vV+4*db,4)}, {vr(vP[X]+4*qb,4)}, {vr(vO+4*(2*db+qb),4)}" for db in range(8) for qb in range(2)]
    def softmax(S, X):
        def T(k, e): return vT + 2*(k % 4) + e
        def Sk(k, e): qb = k & 1; jj = k >> 1; return S + 4*(2*(jj >> 1) + qb) + 2*(jj & 1) + e
        def Pk(k): return vP[X] + 4*(k & 1) + (k >> 1)
        E = lambda k: [f"v_exp_f32 v{T(k,e)}, v{Sk(k,e)}" for e in range(2)]
        def AC(k):
            a = vAcc[k & 1]
            c = f"v_cvt_pk_bf16_f32 v{Pk(k)}, v{T(k,0)}, v{T(k,1)}"
            if k < 2: return [f"v_add_f32 v{a}, v{T(k,0)}, v{T(k,1)}", c]
            return [f"v_add_f32 v{a}, v{a}, v{T(k,0)}", c, f"v_add_f32 v{a}, v{a}, v{T(k,1)}"]
        out = E(0)
        for k in range(8):
            if k + 1 < 8: out += E(k+1)
            out += AC(k)
        return out

    if st4: A("s_memrealtime s[70:71]")
    def wait_inline(tag, need):
        A.label(f"L_ip{tag}")
        A([f"ds_read_b32 v{vTmp}, v1", "s_sub_u32 s25, s25, 1", "s_cbranch_scc1 L_end1", "s_waitcnt lgkmcnt(0)",
           f"v_readfirstlane_b32 {sL}, v{vTmp}", f"s_cmp_ge_i32 {sL}, {need}", f"s_cbranch_scc0 L_ip{tag}"])
    wait_inline("a", 2); A(k_reads(0))
    A("s_waitcnt lgkmcnt(0)")
    A(qk(vSA, True))
    A(k_reads(1))
    A(f"s_mov_b32 {sNV}, 4")
    wait_inline("b", 4)
    if diag: A("s_memrealtime s[82:83]"); A("s_memtime s[88:89]"); A("s_waitcnt lgkmcnt(0)")
    stubs = []
    def flt(L):
        ds = [d for d in drop.split(',') if d]
        return [x for x in L if not any(x.startswith(d) for d in ds)]
    def spread(stream, n):
        tot = sum(cost(x) for x in stream); out = [[] for _ in range(n)]; acc = 0
        for x in stream:
            g = min(n - 1, int((acc + cost(x) / 2.0) * n / tot))
            out[g].append(x); acc += cost(x)
        return out
    A(".p2align 3")
    for i in range(NS):
        X, Y = ('A', 'B') if i % 2 == 0 else ('B', 'A')
        Scur, Snext = (vSA, vSB) if X == 'A' else (vSB, vSA)
        A.label(f"L_body{i}")
        B = []
        q = qk(Snext, False); vrd = v_reads(i); kr = k_reads((i + 2) % NS); p = pv(X)
        st = spread(softmax(Scur, X)[nB:] + [f"v_add_f32 v{vSum}, v{vAcc[0]}, v{vAcc[1]}", f"v_cmp_nge_f32 vcc, {sTHR}, v{vSum}"], 14)
        for g in range(14):
            B.append(q[g])
            nv = 2 if g < 2 else 1
            B += vrd[:nv]; vrd = vrd[nv:]
            B += st[g]
        assert not vrd
        B.append(q[14]); B += kr[0:2]
        B.append(q[15]); B.append("s_waitcnt lgkmcnt(6)"); B += kr[2:3]
        if not drop: B.append(f"s_cbranch_vccnz L_stub{i}")
        B.append(f"L_cont{i}:")
        stubs.append([f"L_stub{i}:", f"s_call_b64 s[62:63], L_slow{X}", f"s_branch L_cont{i}"])
        st = spread(softmax(Snext, Y)[:nB], 13)
        w = wait_L(sNV)
        B.append(p[0]); B += kr[3:4]; B.append(f"v_add_f32 v{vL[0]}, v{vL[0]}, v{vAcc[0]}")
        B.append(p[1]); B += kr[4:5]; B.append(f"v_add_f32 v{vL[1]}, v{vL[1]}, v{vAcc[1]}")
        B.append(p[2]); B += kr[5:6]; B.append(f"v_add_u32 v{vProg}, 1, v{vProg}")
        for g in range(3, 16):
            B.append(p[g])
            if g == 3: B += kr[6:7]
            if g == 4: B += kr[7:8]
            if g == 5: B += ["s_waitcnt lgkmcnt(8)", f"ds_write_b32 v{vProgA}, v{vProg}"]
            if g == 12: B.append(f"s_add_u32 {sNV}, {sNV}, 2")
            if g == 13: B.append(w[0])
            if g == 14: B.append("s_waitcnt lgkmcnt(0)")
            B += st[g - 3]
        if i < NS - 1: B += w[1:]
        else:
            n = len(polls) - 1
            B += ["s_cbranch_scc1 L_body0", f"s_branch L_pent{n}"]
            polls[n] = [x.replace(f"L_ok{n}", "L_body0") for x in polls[n]]
        A(flt(B))
    def xreduce(op, regs, tmps):
        for sw in ("v_permlane16_swap_b32", "v_permlane32_swap_b32"):
            for r, t in zip(regs, tmps): A(f"v_mov_b32 v{t}, v{r}")
            A("s_nop 1")
            for r, t in zip(regs, tmps): A(f"{sw} v{t}, v{r}")
            A("s_nop 1")
            for r, t in zip(regs, tmps): A(f"{op} v{r}, v{r}, v{t}")
    A.label("L_fin")
    if diag: A("s_memrealtime s[84:85]"); A("s_memtime s[90:91]"); A("s_waitcnt lgkmcnt(0)")
    A(f"ds_read_b32 v{vTmp}, v1 offset:4")
    A("v_lshlrev_b32 v12, 4, v0")
    A("s_add_u32 s34, s24, s3"); A("s_and_b32 s34, s34, 7"); A("s_lshl_b32 s34, s34, 13")
    A("s_lshl_b32 s35, s3, 10"); A(f"s_add_u32 s35, s35, {MLB}")
    A("v_add_u32 v13, s35, v12"); A("v_add_u32 v14, s34, v12")
    xreduce("v_add_f32", vL, (vT, vT+1))
    A("s_cmp_eq_u32 s23, 0"); A("s_cbranch_scc0 L_send")
    A("s_waitcnt lgkmcnt(0)")
    A(f"v_readfirstlane_b32 s35, v{vTmp}")
    A("s_cmp_gt_u32 s35, s3"); A("s_cbranch_scc0 L_role")
    A.label("L_roleok")
    if st3: A("s_memtime s[64:65]"); A("s_waitcnt lgkmcnt(0)")
    A("ds_read_b128 v[16:19], v13")
    for i in range(8): A(f"ds_read_b128 {vr(vK+4*i,4)}, v14 offset:{i*1024}")
    A("v_and_b32 v24, 15, v0"); A("v_lshrrev_b32 v25, 4, v0"); A("v_lshlrev_b32 v26, 8, v24")
    A("v_lshrrev_b32 v28, 1, v25"); A("v_xor_b32 v28, v28, v24"); A("v_lshl_add_u32 v28, v28, 4, v26")
    A("v_and_b32 v29, 1, v25"); A("v_lshl_add_u32 v28, v29, 3, v28"); A("v_add_u32 v28, s34, v28")
    fa = (20, 22); fb = (128, 130)
    A("s_waitcnt lgkmcnt(8)")
    for qb in range(2):
        A(f"v_max_f32 v{vT+qb}, v{vM[qb]}, v{16+2*qb}")
        A(f"v_sub_f32 v{fa[qb]}, v{vM[qb]}, v{vT+qb}"); A(f"v_sub_f32 v{fb[qb]}, v{16+2*qb}, v{vT+qb}")
        A(f"v_exp_f32 v{fa[qb]}, v{fa[qb]}"); A(f"v_exp_f32 v{fb[qb]}, v{fb[qb]}")
    for qb in range(2):
        A(f"v_mul_f32 v{vT+qb}, v{vL[qb]}, v{fa[qb]}"); A(f"v_fma_f32 v{vT+qb}, v{17+2*qb}, v{fb[qb]}, v{vT+qb}")
    for qb in range(2): A(f"v_rcp_f32 v{vT+qb}, v{vT+qb}")
    A("v_xor_b32 v29, v24, v25"); A("v_lshlrev_b32 v29, 4, v29"); A("v_lshl_add_u32 v29, v25, 8, v29"); A("v_add_u32 v29, s34, v29")
    for qb in range(2):
        A(f"v_mul_f32 v{fa[qb]}, v{fa[qb]}, v{vT+qb}"); A(f"v_mul_f32 v{fb[qb]}, v{fb[qb]}, v{vT+qb}")
        A(f"v_mov_b32 v{fa[qb]+1}, v{fa[qb]}"); A(f"v_mov_b32 v{fb[qb]+1}, v{fb[qb]}")
    for db in range(8): A(f"v_xor_b32 v{144+db}, {32*db}, v28")
    for k in range(4): A(f"v_xor_b32 v{152+k}, {64*k}, v29")
    A("s_mov_b32 s40, s16"); A("s_mov_b32 s41, s17"); A("s_mov_b32 s42, 0x400000"); A("s_mov_b32 s43, 0x20000")
    A("s_add_u32 s35, s33, 4096")
    A("s_waitcnt lgkmcnt(0)")
    def blk(db, qb):
        q = 2*db + qb; u = 132 + 4*(db % 2); o = vP['A'] + 2*db
        r = []
        for e in range(2):
            r += [f"v_lshlrev_b32 v{u+2*e}, 16, v{vK+2*q+e}", f"v_and_b32 v{u+2*e+1}, 0xffff0000, v{vK+2*q+e}"]
        for e in range(2): r.append(f"v_pk_mul_f32 {vr(vO+4*q+2*e,2)}, {vr(vO+4*q+2*e,2)}, {vr(fa[qb],2)}")
        for e in range(2): r.append(f"v_pk_fma_f32 {vr(vO+4*q+2*e,2)}, {vr(u+2*e,2)}, {vr(fb[qb],2)}, {vr(vO+4*q+2*e,2)}")
        r += [f"v_cvt_pk_bf16_f32 v{o}, v{vO+4*q}, v{vO+4*q+1}", f"v_cvt_pk_bf16_f32 v{o+1}, v{vO+4*q+2}, v{vO+4*q+3}"]
        return r
    def wr(qb): return [f"ds_write_b64 v{144+db}, {vr(vP['A']+2*db,2)} offset:{qb*4096}" for db in range(8)]
    def rd(qb): return [f"ds_read_b128 {vr(vV+16*qb+4*k,4)}, v{152+k} offset:{qb*4096+k*1024}" for k in range(4)]
    def stq(qb, k): return "s_nop 0" if noout else f"buffer_store_dwordx4 {vr(vV+16*qb+4*k,4)}, v12, s[40:43], {'s33' if qb == 0 else 's35'} offen offset:{k*1024} {stflags}"
    for db in range(8): A(blk(db, 0))
    A(wr(0)); A(rd(0))
    for db in range(8):
        A(blk(db, 1))
        if db == 3:
            A("s_waitcnt lgkmcnt(0)")
            for k in range(4): A(stq(0, k))
    if st3: A("s_memtime s[66:67]"); A("s_waitcnt lgkmcnt(0)")
    A(wr(1)); A(rd(1))
    for k in range(4):
        A(f"s_waitcnt lgkmcnt({3-k})"); A(stq(1, k))
    if st3: A("s_memtime s[68:69]")
    A.label("L_done")
    if probe and probe[0] == 'C':
        A("s_waitcnt vmcnt(0)"); spin('C')
    if diag == 1:
        A("s_waitcnt vmcnt(0)")
        A("s_memrealtime s[86:87]")
        A("s_cmp_lg_u32 s3, 0"); A("s_cbranch_scc1 L_end1")
        A("s_mov_b32 s44, s20"); A("s_mov_b32 s45, s21"); A("s_mov_b32 s46, 0x4000000"); A("s_mov_b32 s47, 0x20000")
        A("s_waitcnt lgkmcnt(0)")
        if st3:
            A("s_memtime s[70:71]"); A("s_waitcnt lgkmcnt(0)")
            A("s_sub_u32 s70, s70, s68"); A("s_sub_u32 s68, s68, s66"); A("s_sub_u32 s66, s66, s64"); A("s_sub_u32 s64, s64, s90")
            A("v_mov_b32 v24, s64"); A("v_mov_b32 v25, s66"); A("v_mov_b32 v26, s68"); A("v_mov_b32 v27, s70")
        if st4:
            for i in range(4): A(f"s_sub_u32 s{64+2*i}, s{64+2*i}, s80"); A(f"v_mov_b32 v{24+i}, s{64+2*i}")
        A("s_sub_u32 s90, s90, s88")
        for i in range(8): A(f"v_mov_b32 v{16+i}, s{80+i}")
        if not st3 and not st4: A("v_mov_b32 v24, s90")
        A("s_lshl_b32 s34, s2, 6"); A("v_mov_b32 v15, 0")
        A("s_mov_b64 exec, 1")
        A("s_lshl_b32 s35, s2, 4"); A("s_add_u32 s35, s35, 65536")
        A("buffer_store_dwordx4 v[24:27], v15, s[44:47], s35 offen")
        A("buffer_store_dwordx4 v[16:19], v15, s[44:47], s34 offen")
        A("buffer_store_dwordx4 v[20:23], v15, s[44:47], s34 offen offset:16")
    A.label("L_end1")
    A("s_endpgm")
    A.label("L_role")
    A(f"ds_read_b32 v{vTmp}, v1 offset:4"); A("s_sub_u32 s25, s25, 1"); A("s_cbranch_scc1 L_end1"); A("s_waitcnt lgkmcnt(0)")
    A(f"v_readfirstlane_b32 s35, v{vTmp}")
    A("s_cmp_gt_u32 s35, s3"); A("s_cbranch_scc0 L_role")
    A("s_branch L_roleok")
    A.label("L_send")
    A("s_mov_b32 s44, s20"); A("s_mov_b32 s45, s21"); A("s_mov_b32 s46, 0x4000000"); A("s_mov_b32 s47, 0x20000")
    A(f"s_mul_i32 s35, s22, {OB_WG}"); A(f"s_add_u32 s35, s35, {OUTBOX}")
    A("s_lshl_b32 s34, s3, 10"); A("s_add_u32 s34, s34, s35"); A("s_add_u32 s34, s34, 32768")
    A(f"buffer_store_dwordx4 v[4:7], v12, s[44:47], s34 offen {xst}")
    A("s_lshl_b32 s34, s3, 13"); A("s_add_u32 s35, s35, s34")
    for i in range(8):
        for e in range(4): A(f"v_cvt_pk_bf16_f32 v{vK+4*i+e}, v{vO+8*i+2*e}, v{vO+8*i+2*e+1}")
        if i == 4: A(f"s_add_u32 s35, s35, 4096")
        if not nost: A(f"buffer_store_dwordx4 {vr(vK+4*i,4)}, v12, s[44:47], s35 offen offset:{(i%4)*1024} {xst}")
    A("s_lshl_b32 s35, s22, 7"); A("s_lshl_b32 s34, s3, 2"); A("s_add_u32 s35, s35, s34"); A(f"s_add_u32 s35, s35, {FLAGS}")
    A("v_mov_b32 v14, 1"); A("v_mov_b32 v15, 0")
    A.label("L_sclr")
    A(f"ds_read_b32 v{vTmp}, v1 offset:4"); A("s_sub_u32 s25, s25, 1"); A("s_cbranch_scc1 L_end1"); A("s_waitcnt lgkmcnt(0)")
    A(f"v_readfirstlane_b32 s34, v{vTmp}")
    A("s_cmp_eq_u32 s34, 0"); A("s_cbranch_scc1 L_sclr")
    A("s_waitcnt vmcnt(0)")
    A("s_mov_b64 exec, 1")
    A(f"buffer_store_dword v14, v15, s[44:47], s35 offen {xst}")
    A("s_mov_b64 exec, -1")
    A("s_branch L_done")
    for p in polls: A(p)
    for p in stubs: A(p)
    def slow(X, S, Sn):
        A.label(f"L_slow{X}")
        t = (vT, vT + 1); u = (vT + 2, vT + 3)
        for qb in range(2):
            e = [S + 4*(2*kb + qb) + r for kb in range(2) for r in range(4)]
            A(f"v_max3_f32 v{t[qb]}, v{e[0]}, v{e[1]}, v{e[2]}")
            A(f"v_max3_f32 v{t[qb]}, v{t[qb]}, v{e[3]}, v{e[4]}")
            A(f"v_max3_f32 v{t[qb]}, v{t[qb]}, v{e[5]}, v{e[6]}")
            A(f"v_max_f32 v{t[qb]}, v{t[qb]}, v{e[7]}")
        xreduce("v_max_f32", t, u)
        for qb in range(2):
            A(f"v_max_f32 v{t[qb]}, {sFloor}, v{t[qb]}")
            A(f"v_max_f32 v{u[qb]}, 0, v{t[qb]}")
            A(f"v_exp_f32 v{u[qb]}, -v{u[qb]}")
            A(f"v_add_f32 v{vM[qb]}, v{vM[qb]}, v{t[qb]}")
        A(f"s_mov_b32 {sFloor}, 0")
        for i in range(16):
            A(f"v_sub_f32 v{S+i}, v{S+i}, v{t[(i//4)&1]}"); A(f"v_sub_f32 v{Sn+i}, v{Sn+i}, v{t[(i//4)&1]}")
        for kb in range(2):
            for qb in range(2):
                for r in range(4): A(f"v_sub_f32 v{Cn(kb,qb)+r}, 0, v{vM[qb]}")
        for qb in range(2): A(f"v_mul_f32 v{vL[qb]}, v{vL[qb]}, v{u[qb]}")
        for i in range(64): A(f"v_mul_f32 v{vO+i}, v{vO+i}, v{u[(i//4)&1]}")
        A(softmax(S, X))
        A("s_setpc_b64 s[62:63]")
    slow('A', vSA, vSB)
    slow('B', vSB, vSA)
    A.label("L_codeend")
    A('.section .rodata,"a"'); A(".p2align 6")
    A(f".amdhsa_kernel {KNAME}")
    A(".amdhsa_next_free_vgpr 256"); A(".amdhsa_next_free_sgpr 96"); A(".amdhsa_accum_offset 256")
    A(".amdhsa_group_segment_fixed_size 0"); A(".amdhsa_kernarg_size 72"); A(".amdhsa_user_sgpr_count 2")
    A(".amdhsa_user_sgpr_kernarg_segment_ptr 1"); A(".amdhsa_system_sgpr_workgroup_id_x 1")
    A(".end_amdhsa_kernel")
    return A.text()

if __name__ == '__main__':
    kw = eval("dict(%s)" % (sys.argv[2] if len(sys.argv) > 2 else ""))
    open(sys.argv[1], 'w').write(gen(**kw))
```

```python
import sys, math, struct
KNAME = "standalone__tree_speculative_verify_tree_attention_over_candidate_token_tree__sampling_kernel"
def f2u(x): return struct.unpack('<I', struct.pack('<f', x))[0]

class Asm:
    def __init__(self): self.L = []
    def __call__(self, s):
        if isinstance(s, (list, tuple)):
            for x in s: self(x)
        else: self.L.append(s)
    def label(self, s): self.L.append(s + ":")
    def text(self): return "\n".join(("    " + l if not l.endswith(":") and not l.startswith(";") and not l.startswith(".") else l) for l in self.L) + "\n"

def cost(x):
    if x.endswith(':'): return 0
    return 2 if x.startswith('v_exp') else 1

HEADER = """; Tree-attention verify (GQA, B=16 Hq=32 Hkv=8 T=32 C=4096 D=128), bf16.
"""

def gen(Wa=20, Wb=18, W2=32, Sb=30, S2=60, Ts=61, wgran=1,
        ldflags='nt', qflags='', stflags='sc1', xst='sc1', xld='sc1', diag=0, thr=1024.0,
        lsleep=1, csleep=1, fsleep=1, hsleep=4, drop='', probe=None, trace=0, ramp=(40, 1, 66, 9), nB=20, warm=1, st2=0, st3=0, W0=24, NP=0, pfx=3, pfl='', pfw=4, st4=0, cap=8, S3=200, rend=96, Hcap=30, dip=None, nost=0, nold=0, noout=0, phase=1, qw=8, bal=0, Wl=17, Wh=23, gain=12, rdly=3, nwr=16, rot=0, phi=(0, 3, 2), stride=None):
    if phi: rot = 1
    if stride: assert rot and Ts == 61
    if probe: diag = 2
    A = Asm()
    NS = 8
    VRING = NS * 8192
    MLB = 2 * NS * 8192
    CTL = MLB + 4096
    LDS = CTL + 64
    OUTBOX = 1 << 20
    OB_WG = 4 * 8192 + 4096
    FLAGS = 32 << 20
    SPIN = 1 << 22
    LOG2E = math.log2(math.e)
    def vr(b, n=1): return f"v{b}" if n == 1 else f"v[{b}:{b+n-1}]"
    for l in HEADER.strip().split("\n"): A(l)
    A(f"; @launch grid=(256,1,1) block=(384,1,1) lds={LDS}")
    A('.amdgcn_target "amdgcn-amd-amdhsa--gfx950"')
    A(".text"); A(f".globl {KNAME}"); A(".p2align 8"); A(f".type {KNAME},@function"); A.label(KNAME)
    A("s_cmp_ge_u32 s2, 256"); A("s_cbranch_scc1 L_end0")
    if diag: A("s_memrealtime s[80:81]")
    A("s_load_dwordx16 s[4:19], s[0:1], 0")
    A("s_load_dwordx2 s[20:21], s[0:1], 64")
    A("v_lshrrev_b32 v1, 6, v0")
    A("v_and_b32 v0, 63, v0")
    A("v_readfirstlane_b32 s3, v1")
    if warm & 1:
        A("s_cmp_lg_u32 s3, 1"); A("s_cbranch_scc1 L_nowarm")
        A("s_getpc_b64 s[38:39]")
        A.label("L_pc0")
        A("s_bfe_u32 s36, s2, 0x20003"); A("s_mul_i32 s36, s36, 6144")
        A("v_lshl_add_u32 v20, v0, 7, s36"); A("v_min_u32 v20, L_codeend-L_pc0-4, v20")
        A("global_load_dword v22, v20, s[38:39]")
        A.label("L_nowarm")
    A("v_lshrrev_b32 v2, 4, v0"); A("v_and_b32 v3, 15, v0")
    A(f"v_mov_b32 v1, {CTL}")
    A("v_and_b32 v8, 12, v3"); A("v_cmp_eq_u32 vcc, 4, v8"); A("v_lshl_add_u32 v10, v3, 2, v1"); A("v_mov_b32 v9, 0")
    A("v_cndmask_b32 v8, 0, -5, vcc")
    A("ds_write_b32 v10, v8")
    A("v_xor_b32 v4, v3, v2"); A("v_lshlrev_b32 v4, 4, v4")
    A("v_lshl_add_u32 v4, v2, 8, v4")
    for k in range(1, 4): A(f"v_xor_b32 v{4+k}, {64*k}, v4")
    A("s_and_b32 s22, s2, 7"); A("s_lshr_b32 s23, s2, 4"); A("s_lshl_b32 s23, s23, 3"); A("s_or_b32 s22, s22, s23")
    A("s_bfe_u32 s23, s2, 0x10003")
    A("s_lshl_b32 s2, s22, 1"); A("s_or_b32 s2, s2, s23")
    A(f"s_mov_b32 s25, {SPIN}")
    A("s_mov_b32 s39, 0x20000")
    A("s_cmp_eq_u32 s23, 0")
    A(f"s_cselect_b32 s24, {129-Ts}, {Ts}")
    A("s_cmp_eq_u32 s3, 0"); A("s_cbranch_scc1 L_loader")
    A("s_cmp_eq_u32 s3, 1"); A("s_cbranch_scc1 L_bar1")
    A("s_sub_u32 s3, s3, 2")
    A("s_lshl_b32 s33, s22, 2"); A("s_add_u32 s33, s33, s3"); A("s_lshl_b32 s33, s33, 13")
    A("s_add_u32 s35, s33, 4096")
    A("s_lshl_b32 s34, s3, 13"); A("s_add_u32 s34, s34, 32768")
    A("s_mov_b32 s38, 0x400000"); A("s_mov_b32 m0, s34")
    A("s_waitcnt lgkmcnt(0)")
    A("s_mov_b32 s36, s4"); A("s_mov_b32 s37, s5")
    for q in range(8):
        if q == 4: A("s_add_u32 m0, s34, 4096"); A("s_nop 0")
        A(f"buffer_load_dwordx4 v{4+(q&3)}, s[36:39], {'s33' if q < 4 else 's35'} offen offset:{(q&3)*1024} {qflags} lds")
        if q == 0 and qw < 8: A("s_barrier")
        if qw < 8 and q + 1 >= qw and q < 7: A(f"s_waitcnt vmcnt({qw-1})")
    A("s_cmp_lg_u32 s23, 0"); A("s_cbranch_scc1 L_nomask")
    A("s_mov_b32 s40, s14"); A("s_mov_b32 s41, s15"); A("s_mov_b32 s42, 0x8000"); A("s_mov_b32 s43, 0x20000")
    A("v_lshlrev_b32 v28, 6, v3"); A("v_lshl_add_u32 v28, v2, 3, v28")
    A("s_lshr_b32 s35, s22, 3"); A("s_lshl_b32 s35, s35, 11")
    for kb in range(2):
        for qb in range(2):
            A(f"buffer_load_dwordx2 {vr(240+2*(2*kb+qb),2)}, v28, s[40:43], s35 offen offset:{1024*qb+32*kb}")
    A.label("L_nomask")
    if qw == 8: A("s_barrier")
    A("s_branch L_consumer")
    A.label("L_bar1")
    A("s_waitcnt lgkmcnt(0)")
    A("s_barrier")
    A("s_branch L_helper")

    A.label("L_loader")
    A("s_setprio 3")
    A("s_lshl_b32 s26, s22, 20"); A(f"s_mul_i32 s27, s23, {(128-Ts)*8192}"); A("s_add_u32 s26, s26, s27")
    if rot:
        A("s_mov_b32 s78, s26"); A("s_cmp_eq_u32 s23, 0"); A(f"s_cselect_b32 s79, {128-Ts}, {Ts}"); A("s_lshl_b32 s79, s79, 13"); A("s_add_u32 s79, s79, s78"); A("s_cmp_eq_u32 s23, 0")
        if phi:
            a, h, c = phi
            A(f"s_cselect_b32 s28, 1, {(h - (128-Ts)) % 32}")
            A("s_lshr_b32 s27, s22, 3"); A(f"s_mul_i32 s27, s27, {a}"); A("s_add_u32 s28, s28, s27")
            A("s_and_b32 s27, s22, 7"); A(f"s_mul_i32 s27, s27, {c}"); A("s_add_u32 s27, s27, s28")
        else: A(f"s_mul_i32 s27, s2, {rot}")
        A("s_and_b32 s27, s27, 31"); A("s_lshl_b32 s27, s27, 13"); A("s_add_u32 s26, s26, s27")
        if stride:
            m, msk, add = stride
            A(f"s_mul_i32 s62, s2, {m}"); A("s_lshr_b32 s62, s62, 3"); A(f"s_and_b32 s62, s62, {msk}"); A(f"s_add_u32 s62, s62, {add}"); A("s_lshl_b32 s62, s62, 13")
            A("s_sub_u32 s63, s79, s78")
    A("s_mov_b32 s38, 0x8000000")
    A("s_mov_b32 s30, 0")
    A("s_mov_b32 s32, 0")
    A("s_waitcnt lgkmcnt(0)")
    if st2 == 1: A("s_memrealtime s[90:91]")
    A("s_mov_b32 s36, s6"); A("s_mov_b32 s37, s7")
    def adv(r):
        if stride: return [f"s_add_u32 {r}, {r}, s62", f"s_cmp_ge_u32 {r}, s79", "s_cselect_b32 s35, s63, 0", f"s_sub_u32 {r}, {r}, s35"]
        return [f"s_add_u32 {r}, {r}, 8192"]
    issued = [0]
    def publish(D):
        A(f"s_sub_u32 s68, s32, {D}")
        A("v_mov_b32 v8, s68"); A("ds_write_b32 v1, v8")
    def step(srd, soff, slot, isK, W, startup=False):
        qstar = (W - 2) % 8
        for q in range(8):
            if q == 0: A(f"s_mov_b32 m0, {slot}"); A(f"s_add_u32 s34, {soff}, 4096")
            if q == 4: A(f"s_add_u32 m0, {slot}, 4096"); A("s_nop 0")
            v = 4 + (q & 3) if isK else 17 + (q & 1)
            A(f"buffer_load_dwordx4 v{v}, {srd}, {soff if q < 4 else 's34'} offen offset:{(q&3)*1024} {ldflags} lds")
            issued[0] += 1
            if not (startup and issued[0] < W):
                A(f"s_waitcnt vmcnt({W-1})")
                if q == qstar: publish((W - 2) // 8)
        A("s_add_u32 s32, s32, 1")
        A(f"s_add_u32 {slot}, {slot}, 8192")
        if not startup:
            A(f"s_and_b32 {slot}, {slot}, 0xffff")
            if not isK: A(f"s_bitset1_b32 {slot}, 16")
    step("s[36:39]", "s26", "s30", True, W0, True)
    A("s_barrier")
    A("s_mov_b32 s29, s26")
    A(adv("s26"))
    A("s_mov_b32 s28, s26"); A(adv("s28"))
    A("s_lshl_b32 s27, s22, 13")
    A("s_mov_b32 s47, 0x20000"); A("s_mov_b32 s51, 0x20000")
    A("s_cmp_eq_u32 s23, 0")
    A("s_cselect_b32 s46, 0x100000, s38"); A("s_cselect_b32 s50, 0x100000, s38")
    A("s_cselect_b32 s44, s10, s6"); A("s_cselect_b32 s45, s11, s7")
    A("s_cselect_b32 s48, s12, s8"); A("s_cselect_b32 s49, s13, s9")
    A("s_cselect_b32 s27, s27, s26")
    A("s_cselect_b32 s28, s26, s28")
    step("s[44:47]", "s27", "s30", True, W0, True)
    A("v_lshlrev_b32 v17, 1, v2"); A("v_xor_b32 v17, v3, v17"); A("v_lshlrev_b32 v17, 4, v17")
    A("v_lshl_add_u32 v17, v2, 8, v17")
    A("v_xor_b32 v18, 128, v17")
    A("s_mov_b32 s40, s8"); A("s_mov_b32 s41, s9"); A("s_mov_b32 s42, 0x8000000"); A("s_mov_b32 s43, 0x20000")
    A(f"s_mov_b32 s31, {VRING}")
    if ramp:
        A(f"s_mov_b32 s65, {2*ramp[0]}")
        if phase: A("s_mul_i32 s64, s2, 79"); A("s_and_b32 s64, s64, 127"); A("s_or_b32 s64, s64, 256")
        else: A(f"s_mov_b32 s64, {4*64}")
    A("s_mov_b32 s26, s28")
    step("s[40:43]", "s29", "s31", False, W0, True)
    if st2 == 1: A("s_memrealtime s[92:93]"); A("s_waitcnt vmcnt(16)")
    if diag: A("s_memrealtime s[88:89]")
    A("s_mov_b32 s29, s26")
    step("s[36:39]", "s26", "s30", True, W0, True); A(adv("s26"))
    step("s[48:51]", "s27", "s31", False, W0, True)
    if trace: A("v_mov_b32 v30, 0"); A("v_mov_b32 v31, 0")
    A("v_and_b32 v11, 3, v0"); A("v_lshlrev_b32 v12, 2, v11"); A(f"v_add_u32 v11, {CTL+16}, v12")
    A("s_mov_b32 s56, 2")
    A("v_mov_b32 v13, -4")
    def space(tag, endl, sl):
        A("s_cmp_ge_i32 s33, s57"); A(f"s_cbranch_scc1 L_space{tag}")
        A("v_mov_b32 v13, s57")
        A.label(f"L_spoll{tag}")
        A("ds_read_b32 v14, v11"); A("s_sub_u32 s25, s25, 1"); A(f"s_cbranch_scc1 {endl}"); A("s_waitcnt lgkmcnt(0)")
        A("v_cmp_lt_i32 vcc, v14, v13"); A(f"s_cbranch_vccz L_sok{tag}")
        if sl: A(f"s_sleep {sl}")
        A(f"s_branch L_spoll{tag}")
        A.label(f"L_sok{tag}")
        A("v_readlane_b32 s33, v14, 0"); A("v_readlane_b32 s58, v14, 1"); A("v_readlane_b32 s59, v14, 2"); A("v_readlane_b32 s60, v14, 3")
        A("s_min_i32 s33, s33, s58"); A("s_min_i32 s59, s59, s60"); A("s_min_i32 s33, s33, s59")
        A.label(f"L_space{tag}")
    lpolls = []
    def unit(tag, W, use_ramp, limit, gran, back=None, rd=False):
        ex = [[] for _ in range(17)]
        n = next(n for n in range(16) if (n + 1) % gran == 0 and (8 + n + 2 - W) % 16 < gran)
        c = (8 + n + 2 - W) // 16 * 2
        pub = [f"s_lshl_b32 s68, s56, 1", f"s_add_u32 s68, s68, {c}"]
        if use_ramp:
            r0, k, rmax, lagx = ramp
            pub += ["s_cmp_gt_i32 s68, 4", "s_cselect_b32 s66, s65, 0", f"s_cselect_b32 s67, {4*k}, 0",
                    "s_add_u32 s64, s64, s66", "s_add_u32 s65, s65, s67", f"s_min_u32 s65, s65, {2*rmax}"]
            if Hcap:
                pub += ["v_readfirstlane_b32 s69, v14", "s_max_i32 s69, s69, 0", "s_lshl_b32 s69, s69, 7", f"s_add_u32 s69, s69, {int(cap*64)}",
                        f"s_cmp_lt_u32 s56, {Hcap//2}", "s_cselect_b32 s69, s69, s64", "s_cmp_gt_i32 s64, s69", "s_cselect_b32 s69, 128, 0", "s_sub_u32 s64, s64, s69"]
            pub += ["s_lshl_b32 s67, s56, 7", f"s_sub_u32 s67, s67, {(lagx-1)*64}", "s_cmp_lt_i32 s64, s67", "s_cselect_b32 s67, 128, 0", "s_add_u32 s64, s64, s67",
                    "s_lshr_b32 s66, s64, 6", "s_min_i32 s68, s66, s68"]
        pub += ["v_mov_b32 v8, s68"]
        assert n < 14 and (tag != 'c' or n + 1 < 8), n
        if use_ramp and Hcap and n >= 1:
            ex[max(n - 2, 0)] += ["ds_read_b32 v14, v11"]; pub = ["s_waitcnt lgkmcnt(0)"] + pub
        ex[n] += pub
        ex[n + 1] += ["ds_write_b32 v1, v8"]
        if rot and not stride:
            ex[7] += ["s_cmp_eq_u32 s26, s79", "s_cselect_b32 s26, s78, s26"]
            ex[15] += ["s_cmp_eq_u32 s29, s79", "s_cselect_b32 s29, s78, s29"]
        ex[6] += adv("s26") + ["s_add_u32 s30, s30, 8192", "s_and_b32 s30, s30, 0xffff"]
        ex[13] += ["ds_read_b32 v14, v11"]
        if rd: ex[12] += ["ds_read_b32 v16, v1 offset:12"]
        ex[14] += adv("s29") + ["s_add_u32 s31, s31, 8192", "s_and_b32 s31, s31, 0xffff", "s_bitset1_b32 s31, 16", "s_add_u32 s56, s56, 1"]
        if trace:
            ex[1] += ["s_memrealtime s[70:71]", "s_memtime s[72:73]"]
            ex[14] += ["s_waitcnt lgkmcnt(0)", "s_sub_u32 s61, s56, 2", "s_min_u32 s61, s61, 63"]
        ex[15] += ["s_waitcnt lgkmcnt(0)", "v_cmp_lt_i32 vcc, v14, v13", "v_add_u32 v13, 1, v13"]
        A.label(f"L_unit{tag}")
        for q in range(16):
            isK = q < 8; slot = "s30" if isK else "s31"; soff = "s26" if isK else "s29"
            if q == 8: A.label(f"L_unitV{tag}")
            if q % 8 == 0: A(f"s_mov_b32 m0, {slot}"); A(f"s_add_u32 s34, {soff}, 4096")
            if q % 8 == 4: A(f"s_add_u32 m0, {slot}, 4096"); A("s_nop 0")
            v = 4 + (q & 3) if isK else 17 + (q & 1)
            A(f"buffer_load_dwordx4 v{v}, {'s[36:39]' if isK else 's[40:43]'}, {soff if q % 8 < 4 else 's34'} offen offset:{(q&3)*1024} {ldflags} lds")
            A(ex[q])
            if q == 15:
                if trace: A("s_mov_b32 m0, s61"); A("v_writelane_b32 v30, s70, m0"); A("v_writelane_b32 v31, s72, m0")
                A(f"s_cbranch_vccnz L_lp{tag}"); A.label(f"L_lpok{tag}")
                A(f"s_cmp_lt_u32 s56, {limit}")
            if (q + 1) % gran == 0: A(f"s_waitcnt vmcnt({W-1})")
        A(f"s_cbranch_scc1 {back or 'L_unit' + tag}")
        lpolls.append([f"L_lp{tag}:", "v_subrev_u32 v15, 1, v13", f"L_lq{tag}:"] + ([f"s_sleep {lsleep}"] if lsleep else []) +
                      ["ds_read_b32 v14, v11", "s_sub_u32 s25, s25, 1", "s_cbranch_scc1 L_end0", "s_waitcnt lgkmcnt(0)",
                       "v_cmp_lt_i32 vcc, v14, v15", f"s_cbranch_vccnz L_lq{tag}", f"s_branch L_lpok{tag}"])
    A("s_sub_u32 s57, s24, 1")
    A(f"s_min_u32 s58, s57, {S2}")
    if ramp: unit("a", Wa, True, Sb, 1)
    Hc = Hcap; Hcap = 0
    if not bal: unit("b", Wb, bool(ramp), "s58", 1)
    else:
        duty0 = int(round(256 * (Wb - Wl) / (Wh - Wl)))
        A("s_memrealtime s[74:75]"); A("s_and_b32 s59, s64, 127"); A("s_lshl_b32 s59, s59, 1"); A("v_mov_b32 v16, 0")
        A("s_waitcnt lgkmcnt(0)"); A("s_or_b32 s74, s74, 1"); A("v_mov_b32 v8, s74"); A("ds_write_b32 v1, v8 offset:8")
        A.label("L_disp")
        A("v_readfirstlane_b32 s60, v16"); A(f"s_add_u32 s60, s60, {duty0}")
        A("s_add_u32 s59, s59, s60"); A("s_cmp_ge_u32 s59, 256"); A("s_cbranch_scc1 L_hi")
        unit("l", Wl, bool(ramp), "s58", 1, back="L_disp", rd=True)
        A("s_branch L_balx")
        A.label("L_hi")
        A("s_sub_u32 s59, s59, 256")
        unit("h", Wh, bool(ramp), "s58", 1, back="L_disp", rd=True)
        A.label("L_balx")
    Hcap = Hc
    A("s_cmp_lt_u32 s56, s57"); A("s_cbranch_scc0 L_unitVc")
    unit("c", W2, False, "s57", wgran)
    A("s_cmp_eq_u32 s56, s57"); A("s_cbranch_scc1 L_unitVc")
    A("s_lshl_b32 s32, s24, 1")
    if diag: A("s_memrealtime s[82:83]")
    for r in range(4, 0, -1):
        if r == 3: continue
        A(f"s_sub_u32 s68, s32, {r if r > 1 else 0}")
        A("v_mov_b32 v8, s68")
        A(f"s_waitcnt vmcnt({8*r})")
        A("ds_write_b32 v1, v8")
    A("s_add_u32 s68, s32, 2")
    A("v_mov_b32 v8, s68")
    A("s_waitcnt vmcnt(0)")
    A("ds_write_b32 v1, v8")
    if diag: A("s_memrealtime s[84:85]")
    A("s_waitcnt lgkmcnt(0)")
    def spin(tag):
        who, base, reg, mult = probe[:4]
        if len(probe) > 4: A(f"s_cmp_lg_u32 s2, {probe[4]}"); A(f"s_cbranch_scc1 L_spinx{tag}")
        A("s_memrealtime s[86:87]"); A("s_waitcnt lgkmcnt(0)")
        A(f"s_sub_u32 s94, s{reg}, s80"); A(f"s_mul_i32 s94, s94, {mult}"); A(f"s_add_u32 s94, s94, {base*100}")
        A("s_min_u32 s94, s94, 50000")
        A.label(f"L_spin{tag}")
        A("s_sleep 2"); A("s_memrealtime s[76:77]"); A("s_waitcnt lgkmcnt(0)")
        A("s_sub_u32 s76, s76, s80"); A("s_cmp_lt_u32 s76, s94"); A(f"s_cbranch_scc1 L_spin{tag}")
        A.label(f"L_spinx{tag}")
    if probe and probe[0] == 'L': spin('L')
    if diag == 1:
        A("s_mov_b32 s52, s20"); A("s_mov_b32 s53, s21"); A("s_mov_b32 s54, 0x4000000"); A("s_mov_b32 s55, 0x20000")
        if st2:
            A("s_sub_u32 s90, s90, s80"); A("s_sub_u32 s92, s92, s80"); A("s_sub_u32 s88, s88, s80")
            A("s_lshl_b32 s92, s92, 16"); A("s_or_b32 s82, s90, s92"); A("s_mov_b32 s83, s88")
        A("s_getreg_b32 s80, hwreg(HW_REG_XCC_ID)"); A("s_xor_b32 s81, s23, 1")
        for i in range(6): A(f"v_mov_b32 v{20+i}, s{80+i}")
        A("s_lshl_b32 s34, s2, 6"); A("v_mov_b32 v15, 0")
        A("s_mov_b64 exec, 1")
        A("buffer_store_dwordx4 v[20:23], v15, s[52:55], s34 offen offset:32")
        A("buffer_store_dwordx2 v[24:25], v15, s[52:55], s34 offen offset:48")
        if trace:
            A("s_mov_b64 exec, -1")
            A("v_lshlrev_b32 v15, 3, v0"); A("s_lshl_b32 s34, s2, 9"); A("s_add_u32 s34, s34, 131072")
            A("buffer_store_dwordx2 v[30:31], v15, s[52:55], s34 offen")
    A.label("L_end0")
    A("s_endpgm")
    for p in lpolls: A(p)

    A.label("L_helper")
    def warm_code(tag, lab, endlab, nload):
        A("s_getpc_b64 s[38:39]")
        A.label(f"L_pc{tag}")
        A(f"s_add_u32 s38, s38, {lab}-L_pc{tag}"); A("s_addc_u32 s39, s39, 0")
        A("v_lshlrev_b32 v20, 7, v0")
        for i in range(nload):
            if i: A("v_add_u32 v20, 8192, v20")
            A(f"v_min_u32 v21, {endlab}-{lab}-4, v20")
            A(f"global_load_dword v{22+i}, v21, s[38:39]")
    A("v_and_b32 v11, 3, v0"); A("v_lshlrev_b32 v12, 2, v11"); A(f"v_add_u32 v11, {CTL+16}, v12")
    A("s_lshl_b32 s35, s22, 7"); A(f"s_add_u32 s35, s35, {FLAGS}")
    A("s_mov_b32 s52, s20"); A("s_mov_b32 s53, s21"); A("s_mov_b32 s54, 0x4000000"); A("s_mov_b32 s55, 0x20000")
    A("s_mov_b32 s33, -5")
    A("s_cmp_lg_u32 s2, 0"); A("s_cbranch_scc1 L_hrecv")
    A(f"s_mov_b32 s40, {FLAGS + 128*128}")
    A("s_mov_b64 exec, 1")
    A("buffer_load_dwordx2 v[16:17], v9, s[52:55], s40 offen sc1")
    A("s_waitcnt vmcnt(0)")
    A("v_or_b32 v16, 1, v16"); A("v_add_co_u32 v16, vcc, 2, v16"); A("s_nop 1"); A("v_addc_co_u32 v17, vcc, 0, v17, vcc")
    A("buffer_store_dwordx2 v[16:17], v9, s[52:55], s40 offen sc1")
    A("global_store_dwordx2 v9, v[16:17], s[18:19] sc1")
    A("s_mov_b64 exec, -1")
    A.label("L_hrecv")
    if bal:
        A.label("L_hb0")
        A(f"s_sleep {hsleep}")
        A("ds_read_b32 v14, v1 offset:8"); A("s_sub_u32 s25, s25, 1"); A("s_cbranch_scc1 L_end2"); A("s_waitcnt lgkmcnt(0)")
        A("v_readfirstlane_b32 s40, v14"); A("s_cmp_eq_u32 s40, 0"); A("s_cbranch_scc1 L_hb0")
        A("s_sub_u32 s41, s2, 64"); A(f"s_cmp_lt_u32 s41, {nwr}"); A("s_cbranch_scc0 L_hb1")
        A("s_lshl_b32 s41, s41, 2"); A("v_mov_b32 v16, s41")
        A("s_mov_b64 exec, 1")
        A("global_store_dword v16, v14, s[18:19] offset:128 sc1")
        A("s_mov_b64 exec, -1")
        A.label("L_hb1")
        A(f"s_mov_b32 s57, {Sb + rdly}")
        space("b", "L_end2", hsleep)
        A(f"v_and_b32 v16, {nwr-1}, v0"); A("v_lshlrev_b32 v16, 2, v16")
        A("global_load_dword v17, v16, s[18:19] offset:128 sc1")
        A("s_mov_b32 s41, 0"); A("s_mov_b32 s42, 0")
        A("s_waitcnt vmcnt(0)")
        for j in range(nwr):
            A(f"v_readlane_b32 s43, v17, {j}")
            A("s_sub_u32 s44, s40, s43"); A("s_cmp_lg_u32 s43, 0"); A("s_cselect_b32 s44, s44, 0"); A("s_addc_u32 s42, s42, 0"); A("s_add_u32 s41, s41, s44")
        A("v_cvt_f32_i32 v16, s41"); A("s_max_u32 s42, s42, 1"); A("v_cvt_f32_u32 v17, s42"); A("v_rcp_f32 v17, v17")
        A(f"v_mul_f32 v16, {hex(f2u(gain/16.0))}, v16"); A("v_mul_f32 v16, v16, v17"); A("v_cvt_i32_f32 v16, v16")
        duty0 = int(round(256 * (Wb - Wl) / (Wh - Wl)))
        A(f"v_max_i32 v16, {-duty0}, v16"); A(f"v_min_i32 v16, {256-duty0}, v16")
        A("ds_write_b32 v1, v16 offset:12")
    A(f"s_mov_b32 s57, {Ts - 14}")
    space("g", "L_end2", hsleep)
    if warm & 2: warm_code("1", "L_fin", "L_end1", 1)
    A.label("L_hst")
    A("global_load_dwordx2 v[16:17], v9, s[18:19] sc1")
    A("s_sub_u32 s25, s25, 64"); A("s_cbranch_scc1 L_end2")
    A("s_waitcnt vmcnt(0)")
    A("v_readfirstlane_b32 s37, v16"); A("s_cmp_lg_u32 s37, 0"); A("s_cbranch_scc1 L_hst_ok")
    A(f"s_sleep {hsleep}"); A("s_branch L_hst")
    A.label("L_hst_ok")
    A("ds_write_b64 v1, v[16:17] offset:32")
    A("s_waitcnt lgkmcnt(0)")
    A("s_cmp_eq_u32 s23, 1"); A("s_cbranch_scc1 L_end2")
    A("s_sub_u32 s57, s24, 5")
    space("h", "L_end2", lsleep)
    A("v_lshlrev_b32 v12, 1, v12")
    A.label("L_fpoll")
    A(f"buffer_load_dwordx2 v[14:15], v12, s[52:55], s35 offen {xld}")
    A("s_sub_u32 s25, s25, 64"); A("s_cbranch_scc1 L_end2")
    A("s_waitcnt vmcnt(0)")
    A("v_cmp_ne_u64 vcc, v[14:15], v[16:17]"); A("s_cbranch_vccz L_fok")
    if fsleep: A(f"s_sleep {fsleep}")
    A("s_branch L_fpoll")
    A.label("L_fok")
    A("v_lshlrev_b32 v3, 4, v0")
    A(f"s_mul_i32 s35, s22, {OB_WG}"); A(f"s_add_u32 s35, s35, {OUTBOX}")
    A(f"s_mov_b32 m0, {MLB}"); A("s_add_u32 s34, s35, 32768")
    for q in range(4): A(f"buffer_load_dwordx4 v3, s[52:55], s34 offen offset:{q*1024} {xld} lds")
    A("s_and_b32 s30, s24, 7"); A("s_lshl_b32 s30, s30, 13")
    for r in range(4):
        for hh in range(2):
            A(f"s_add_u32 m0, s30, {hh*4096}")
            A("s_nop 0")
            for q in range(4):
                if not nold: A(f"buffer_load_dwordx4 v3, s[52:55], s35 offen offset:{q*1024} {xld} lds")
            A("s_add_u32 s35, s35, 4096")
        A("s_add_u32 s30, s30, 8192"); A("s_and_b32 s30, s30, 0xffff")
    for k in range(4):
        A(f"v_mov_b32 v8, {k+1}"); A(f"s_waitcnt vmcnt({24-8*k})"); A("ds_write_b32 v1, v8 offset:4")
    if diag == 1:
        A("s_memrealtime s[86:87]"); A("s_waitcnt lgkmcnt(0)")
        A("v_mov_b32 v16, s86"); A("v_mov_b32 v17, s87"); A("s_lshl_b32 s34, s2, 6")
        A("s_mov_b64 exec, 1")
        A("buffer_store_dwordx2 v[16:17], v9, s[52:55], s34 offen offset:56")
    A("s_waitcnt lgkmcnt(0)")
    A.label("L_end2")
    A("s_endpgm")

    A.label("L_consumer")
    vQ, vO, vSA, vSB, vK, vV, vT = 32, 64, 128, 144, 160, 192, 240
    vP = {'A': 224, 'B': 232}
    vM = (4, 6); vL = (5, 7); vAcc = (2, 3); vProgA, vProg, vTmp, vSum = 8, 9, 10, 11
    vKa, vVa = 12, 16
    def Cn(kb, qb): return (24 if kb == 0 else 248) + 4*qb
    sC, sTHR, sL, sNV, sNK, sFloor, sEnd = 's26', 's27', 's28', 's29', 's30', 's31', 's32'
    MF = "v_mfma_f32_16x16x32_bf16"
    if st4: A("s_memrealtime s[64:65]")
    A("v_xor_b32 v29, v2, v3"); A("v_lshlrev_b32 v30, 8, v3")
    A(f"v_lshl_add_u32 v{vKa}, v29, 4, v30")
    for ks in range(1, 4): A(f"v_xor_b32 v{vKa+ks}, {64*ks}, v{vKa}")
    A("v_lshrrev_b32 v29, 2, v0")
    A("v_lshlrev_b32 v30, 8, v29")
    A("v_and_b32 v29, 7, v29"); A("v_lshl_add_u32 v30, v29, 5, v30")
    A("v_and_b32 v29, 3, v0"); A("v_lshl_add_u32 v30, v29, 3, v30")
    A(f"v_add_u32 v{vVa}, {VRING}, v30")
    for db in range(1, 8): A(f"v_xor_b32 v{vVa+db}, {32*db}, v{vVa}")
    for ks in range(4): A(f"v_add_u32 v{vP['A']+ks}, s34, v{vKa+ks}")
    A("s_lshl_b32 s35, s3, 2"); A(f"s_add_u32 s35, s35, {CTL+16}"); A(f"v_mov_b32 v{vProgA}, s35")
    A(f"v_mov_b32 v{vProg}, 0")
    A(f"s_mov_b32 {sC}, {hex(f2u(LOG2E / math.sqrt(128.0)))}")
    A(f"s_mov_b32 {sTHR}, {hex(f2u(thr))}")
    A(f"s_mov_b32 {sL}, 0"); A(f"s_mov_b32 {sFloor}, 0xff800000")
    for qb in range(2):
        A(f"v_mov_b32 v{vM[qb]}, 0"); A(f"v_mov_b32 v{vL[qb]}, 0"); A(f"v_mov_b32 v{vAcc[qb]}, 0x7f800000")
    for i in range(64): A(f"v_mov_b32 v{vO+i}, 0")
    A(f"s_lshl_b32 {sEnd}, s24, 1"); A(f"s_add_u32 {sEnd}, {sEnd}, 4")
    for kb in range(2):
        for i in range(8): A(f"v_mov_b32 v{Cn(kb,0)+i}, 0")
    if st4: A("s_memrealtime s[66:67]")
    A("s_waitcnt vmcnt(0)")
    if st4: A("s_memrealtime s[68:69]")
    for qb in range(2):
        for ks in range(4): A(f"ds_read_b128 {vr(vQ+4*(qb*4+ks),4)}, v{vP['A']+ks} offset:{qb*4096}")
    A("s_cmp_lg_u32 s23, 0"); A("s_cbranch_scc1 L_nomask2")
    A(f"s_mov_b32 s35, {hex(f2u(-1e9 * LOG2E))}")
    for kb in range(2):
        for qb in range(2):
            for i in range(4):
                src = vT + 2*(2*kb+qb) + i//2; d = Cn(kb, qb) + i
                if i % 2 == 0: A(f"v_lshlrev_b32 v{d}, 16, v{src}")
                else: A(f"v_and_b32 v{d}, 0xffff0000, v{src}")
                A(f"v_fma_f32 v{d}, v{d}, -s35, s35")
    A.label("L_nomask2")
    A("s_waitcnt lgkmcnt(0)")
    A(f"ds_write_b32 v{vProgA}, v{vProg}")
    for i in range(32):
        t = vT + 2*(i % 4)
        A(f"v_lshlrev_b32 v{t}, 16, v{vQ+i}"); A(f"v_and_b32 v{t+1}, 0xffff0000, v{vQ+i}")
        A(f"v_mul_f32 v{t}, {sC}, v{t}"); A(f"v_mul_f32 v{t+1}, {sC}, v{t+1}")
        A(f"v_cvt_pk_bf16_f32 v{vQ+i}, v{t}, v{t+1}")

    polls = []
    def wait_L(need):
        n = len(polls)
        body = [f"L_pent{n}:", f"s_cmp_eq_u32 {need}, {sEnd}", "s_cbranch_scc1 L_fin", f"L_poll{n}:", f"ds_read_b32 v{vTmp}, v1", "s_sub_u32 s25, s25, 1", "s_cbranch_scc1 L_end1", "s_waitcnt lgkmcnt(0)",
                f"v_readfirstlane_b32 {sL}, v{vTmp}", f"s_cmp_ge_i32 {sL}, {need}", f"s_cbranch_scc1 L_ok{n}"]
        if csleep: body.append(f"s_sleep {csleep}")
        body.append(f"s_branch L_poll{n}")
        polls.append(body)
        return [f"s_cmp_ge_i32 {sL}, {need}", f"s_cbranch_scc0 L_pent{n}", f"L_ok{n}:"]
    def Kf(ks, kb): return vK + 4*(2*ks + kb)
    def k_reads(slot): return [f"ds_read_b128 {vr(Kf(ks,kb),4)}, v{vKa+ks} offset:{slot*8192+kb*4096}" for ks in range(4) for kb in range(2)]
    def v_reads(slot): return [f"ds_read_b64_tr_b16 {vr(vV+4*db+2*u,2)}, v{vVa+db} offset:{slot*8192+u*4096}" for db in range(8) for u in range(2)]
    def qk(S, zero):
        return [f"{MF} {vr(S+4*(2*kb+qb),4)}, {vr(Kf(ks,kb),4)}, {vr(vQ+4*(qb*4+ks),4)}, {('0' if zero else vr(Cn(kb,qb),4)) if ks == 0 else vr(S+4*(2*kb+qb),4)}"
                for ks in range(4) for kb in range(2) for qb in range(2)]
    def pv(X):
        return [f"{MF} {vr(vO+4*(2*db+qb),4)}, {vr(vV+4*db,4)}, {vr(vP[X]+4*qb,4)}, {vr(vO+4*(2*db+qb),4)}" for db in range(8) for qb in range(2)]
    def softmax(S, X):
        def T(k, e): return vT + 2*(k % 4) + e
        def Sk(k, e): qb = k & 1; jj = k >> 1; return S + 4*(2*(jj >> 1) + qb) + 2*(jj & 1) + e
        def Pk(k): return vP[X] + 4*(k & 1) + (k >> 1)
        E = lambda k: [f"v_exp_f32 v{T(k,e)}, v{Sk(k,e)}" for e in range(2)]
        def AC(k):
            a = vAcc[k & 1]
            c = f"v_cvt_pk_bf16_f32 v{Pk(k)}, v{T(k,0)}, v{T(k,1)}"
            if k < 2: return [f"v_add_f32 v{a}, v{T(k,0)}, v{T(k,1)}", c]
            return [f"v_add_f32 v{a}, v{a}, v{T(k,0)}", c, f"v_add_f32 v{a}, v{a}, v{T(k,1)}"]
        out = E(0)
        for k in range(8):
            if k + 1 < 8: out += E(k+1)
            out += AC(k)
        return out

    if st4: A("s_memrealtime s[70:71]")
    def wait_inline(tag, need):
        A.label(f"L_ip{tag}")
        A([f"ds_read_b32 v{vTmp}, v1", "s_sub_u32 s25, s25, 1", "s_cbranch_scc1 L_end1", "s_waitcnt lgkmcnt(0)",
           f"v_readfirstlane_b32 {sL}, v{vTmp}", f"s_cmp_ge_i32 {sL}, {need}", f"s_cbranch_scc0 L_ip{tag}"])
    wait_inline("a", 2); A(k_reads(0))
    A("s_waitcnt lgkmcnt(0)")
    A(qk(vSA, True))
    A(k_reads(1))
    A(f"s_mov_b32 {sNV}, 4")
    wait_inline("b", 4)
    if diag: A("s_memrealtime s[82:83]"); A("s_memtime s[88:89]"); A("s_waitcnt lgkmcnt(0)")
    stubs = []
    def flt(L):
        ds = [d for d in drop.split(',') if d]
        return [x for x in L if not any(x.startswith(d) for d in ds)]
    def spread(stream, n):
        tot = sum(cost(x) for x in stream); out = [[] for _ in range(n)]; acc = 0
        for x in stream:
            g = min(n - 1, int((acc + cost(x) / 2.0) * n / tot))
            out[g].append(x); acc += cost(x)
        return out
    A(".p2align 3")
    for i in range(NS):
        X, Y = ('A', 'B') if i % 2 == 0 else ('B', 'A')
        Scur, Snext = (vSA, vSB) if X == 'A' else (vSB, vSA)
        A.label(f"L_body{i}")
        B = []
        q = qk(Snext, False); vrd = v_reads(i); kr = k_reads((i + 2) % NS); p = pv(X)
        st = spread(softmax(Scur, X)[nB:] + [f"v_add_f32 v{vSum}, v{vAcc[0]}, v{vAcc[1]}", f"v_cmp_nge_f32 vcc, {sTHR}, v{vSum}"], 14)
        for g in range(14):
            B.append(q[g])
            nv = 2 if g < 2 else 1
            B += vrd[:nv]; vrd = vrd[nv:]
            B += st[g]
        assert not vrd
        B.append(q[14]); B += kr[0:2]
        B.append(q[15]); B.append("s_waitcnt lgkmcnt(6)"); B += kr[2:3]
        if not drop: B.append(f"s_cbranch_vccnz L_stub{i}")
        B.append(f"L_cont{i}:")
        stubs.append([f"L_stub{i}:", f"s_call_b64 s[62:63], L_slow{X}", f"s_branch L_cont{i}"])
        st = spread(softmax(Snext, Y)[:nB], 13)
        w = wait_L(sNV)
        B.append(p[0]); B += kr[3:4]; B.append(f"v_add_f32 v{vL[0]}, v{vL[0]}, v{vAcc[0]}")
        B.append(p[1]); B += kr[4:5]; B.append(f"v_add_f32 v{vL[1]}, v{vL[1]}, v{vAcc[1]}")
        B.append(p[2]); B += kr[5:6]; B.append(f"v_add_u32 v{vProg}, 1, v{vProg}")
        for g in range(3, 16):
            B.append(p[g])
            if g == 3: B += kr[6:7]
            if g == 4: B += kr[7:8]
            if g == 5: B += ["s_waitcnt lgkmcnt(8)", f"ds_write_b32 v{vProgA}, v{vProg}"]
            if g == 12: B.append(f"s_add_u32 {sNV}, {sNV}, 2")
            if g == 13: B.append(w[0])
            if g == 14: B.append("s_waitcnt lgkmcnt(0)")
            B += st[g - 3]
        if i < NS - 1: B += w[1:]
        else:
            n = len(polls) - 1
            B += ["s_cbranch_scc1 L_body0", f"s_branch L_pent{n}"]
            polls[n] = [x.replace(f"L_ok{n}", "L_body0") for x in polls[n]]
        A(flt(B))
    def xreduce(op, regs, tmps):
        for sw in ("v_permlane16_swap_b32", "v_permlane32_swap_b32"):
            for r, t in zip(regs, tmps): A(f"v_mov_b32 v{t}, v{r}")
            A("s_nop 1")
            for r, t in zip(regs, tmps): A(f"{sw} v{t}, v{r}")
            A("s_nop 1")
            for r, t in zip(regs, tmps): A(f"{op} v{r}, v{r}, v{t}")
    A.label("L_fin")
    if diag: A("s_memrealtime s[84:85]"); A("s_memtime s[90:91]"); A("s_waitcnt lgkmcnt(0)")
    A(f"ds_read_b32 v{vTmp}, v1 offset:4")
    A("v_lshlrev_b32 v12, 4, v0")
    A("s_add_u32 s34, s24, s3"); A("s_and_b32 s34, s34, 7"); A("s_lshl_b32 s34, s34, 13")
    A("s_lshl_b32 s35, s3, 10"); A(f"s_add_u32 s35, s35, {MLB}")
    A("v_add_u32 v13, s35, v12"); A("v_add_u32 v14, s34, v12")
    xreduce("v_add_f32", vL, (vT, vT+1))
    A("s_cmp_eq_u32 s23, 0"); A("s_cbranch_scc0 L_send")
    A("s_waitcnt lgkmcnt(0)")
    A(f"v_readfirstlane_b32 s35, v{vTmp}")
    A("s_cmp_gt_u32 s35, s3"); A("s_cbranch_scc0 L_role")
    A.label("L_roleok")
    if st3: A("s_memtime s[64:65]"); A("s_waitcnt lgkmcnt(0)")
    A("ds_read_b128 v[16:19], v13")
    for i in range(8): A(f"ds_read_b128 {vr(vK+4*i,4)}, v14 offset:{i*1024}")
    A("v_and_b32 v24, 15, v0"); A("v_lshrrev_b32 v25, 4, v0"); A("v_lshlrev_b32 v26, 8, v24")
    A("v_lshrrev_b32 v28, 1, v25"); A("v_xor_b32 v28, v28, v24"); A("v_lshl_add_u32 v28, v28, 4, v26")
    A("v_and_b32 v29, 1, v25"); A("v_lshl_add_u32 v28, v29, 3, v28"); A("v_add_u32 v28, s34, v28")
    fa = (20, 22); fb = (128, 130)
    A("s_waitcnt lgkmcnt(8)")
    for qb in range(2):
        A(f"v_max_f32 v{vT+qb}, v{vM[qb]}, v{16+2*qb}")
        A(f"v_sub_f32 v{fa[qb]}, v{vM[qb]}, v{vT+qb}"); A(f"v_sub_f32 v{fb[qb]}, v{16+2*qb}, v{vT+qb}")
        A(f"v_exp_f32 v{fa[qb]}, v{fa[qb]}"); A(f"v_exp_f32 v{fb[qb]}, v{fb[qb]}")
    for qb in range(2):
        A(f"v_mul_f32 v{vT+qb}, v{vL[qb]}, v{fa[qb]}"); A(f"v_fma_f32 v{vT+qb}, v{17+2*qb}, v{fb[qb]}, v{vT+qb}")
    for qb in range(2): A(f"v_rcp_f32 v{vT+qb}, v{vT+qb}")
    A("v_xor_b32 v29, v24, v25"); A("v_lshlrev_b32 v29, 4, v29"); A("v_lshl_add_u32 v29, v25, 8, v29"); A("v_add_u32 v29, s34, v29")
    for qb in range(2):
        A(f"v_mul_f32 v{fa[qb]}, v{fa[qb]}, v{vT+qb}"); A(f"v_mul_f32 v{fb[qb]}, v{fb[qb]}, v{vT+qb}")
        A(f"v_mov_b32 v{fa[qb]+1}, v{fa[qb]}"); A(f"v_mov_b32 v{fb[qb]+1}, v{fb[qb]}")
    for db in range(8): A(f"v_xor_b32 v{144+db}, {32*db}, v28")
    for k in range(4): A(f"v_xor_b32 v{152+k}, {64*k}, v29")
    A("s_mov_b32 s40, s16"); A("s_mov_b32 s41, s17"); A("s_mov_b32 s42, 0x400000"); A("s_mov_b32 s43, 0x20000")
    A("s_add_u32 s35, s33, 4096")
    A("s_waitcnt lgkmcnt(0)")
    def blk(db, qb):
        q = 2*db + qb; u = 132 + 4*(db % 2); o = vP['A'] + 2*db
        r = []
        for e in range(2):
            r += [f"v_lshlrev_b32 v{u+2*e}, 16, v{vK+2*q+e}", f"v_and_b32 v{u+2*e+1}, 0xffff0000, v{vK+2*q+e}"]
        for e in range(2): r.append(f"v_pk_mul_f32 {vr(vO+4*q+2*e,2)}, {vr(vO+4*q+2*e,2)}, {vr(fa[qb],2)}")
        for e in range(2): r.append(f"v_pk_fma_f32 {vr(vO+4*q+2*e,2)}, {vr(u+2*e,2)}, {vr(fb[qb],2)}, {vr(vO+4*q+2*e,2)}")
        r += [f"v_cvt_pk_bf16_f32 v{o}, v{vO+4*q}, v{vO+4*q+1}", f"v_cvt_pk_bf16_f32 v{o+1}, v{vO+4*q+2}, v{vO+4*q+3}"]
        return r
    def wr(qb): return [f"ds_write_b64 v{144+db}, {vr(vP['A']+2*db,2)} offset:{qb*4096}" for db in range(8)]
    def rd(qb): return [f"ds_read_b128 {vr(vV+16*qb+4*k,4)}, v{152+k} offset:{qb*4096+k*1024}" for k in range(4)]
    def stq(qb, k): return "s_nop 0" if noout else f"buffer_store_dwordx4 {vr(vV+16*qb+4*k,4)}, v12, s[40:43], {'s33' if qb == 0 else 's35'} offen offset:{k*1024} {stflags}"
    for db in range(8): A(blk(db, 0))
    A(wr(0)); A(rd(0))
    for db in range(8):
        A(blk(db, 1))
        if db == 3:
            A("s_waitcnt lgkmcnt(0)")
            for k in range(4): A(stq(0, k))
    if st3: A("s_memtime s[66:67]"); A("s_waitcnt lgkmcnt(0)")
    A(wr(1)); A(rd(1))
    for k in range(4):
        A(f"s_waitcnt lgkmcnt({3-k})"); A(stq(1, k))
    if st3: A("s_memtime s[68:69]")
    A.label("L_done")
    if probe and probe[0] == 'C':
        A("s_waitcnt vmcnt(0)"); spin('C')
    if diag == 1:
        A("s_waitcnt vmcnt(0)")
        A("s_memrealtime s[86:87]")
        A("s_cmp_lg_u32 s3, 0"); A("s_cbranch_scc1 L_end1")
        A("s_mov_b32 s44, s20"); A("s_mov_b32 s45, s21"); A("s_mov_b32 s46, 0x4000000"); A("s_mov_b32 s47, 0x20000")
        A("s_waitcnt lgkmcnt(0)")
        if st3:
            A("s_memtime s[70:71]"); A("s_waitcnt lgkmcnt(0)")
            A("s_sub_u32 s70, s70, s68"); A("s_sub_u32 s68, s68, s66"); A("s_sub_u32 s66, s66, s64"); A("s_sub_u32 s64, s64, s90")
            A("v_mov_b32 v24, s64"); A("v_mov_b32 v25, s66"); A("v_mov_b32 v26, s68"); A("v_mov_b32 v27, s70")
        if st4:
            for i in range(4): A(f"s_sub_u32 s{64+2*i}, s{64+2*i}, s80"); A(f"v_mov_b32 v{24+i}, s{64+2*i}")
        A("s_sub_u32 s90, s90, s88")
        for i in range(8): A(f"v_mov_b32 v{16+i}, s{80+i}")
        if not st3 and not st4: A("v_mov_b32 v24, s90")
        A("s_lshl_b32 s34, s2, 6"); A("v_mov_b32 v15, 0")
        A("s_mov_b64 exec, 1")
        A("s_lshl_b32 s35, s2, 4"); A("s_add_u32 s35, s35, 65536")
        A("buffer_store_dwordx4 v[24:27], v15, s[44:47], s35 offen")
        A("buffer_store_dwordx4 v[16:19], v15, s[44:47], s34 offen")
        A("buffer_store_dwordx4 v[20:23], v15, s[44:47], s34 offen offset:16")
    A.label("L_end1")
    A("s_endpgm")
    A.label("L_role")
    A(f"ds_read_b32 v{vTmp}, v1 offset:4"); A("s_sub_u32 s25, s25, 1"); A("s_cbranch_scc1 L_end1"); A("s_waitcnt lgkmcnt(0)")
    A(f"v_readfirstlane_b32 s35, v{vTmp}")
    A("s_cmp_gt_u32 s35, s3"); A("s_cbranch_scc0 L_role")
    A("s_branch L_roleok")
    A.label("L_send")
    A("s_mov_b32 s44, s20"); A("s_mov_b32 s45, s21"); A("s_mov_b32 s46, 0x4000000"); A("s_mov_b32 s47, 0x20000")
    A(f"s_mul_i32 s35, s22, {OB_WG}"); A(f"s_add_u32 s35, s35, {OUTBOX}")
    A("s_lshl_b32 s34, s3, 10"); A("s_add_u32 s34, s34, s35"); A("s_add_u32 s34, s34, 32768")
    A(f"buffer_store_dwordx4 v[4:7], v12, s[44:47], s34 offen {xst}")
    A("s_lshl_b32 s34, s3, 13"); A("s_add_u32 s35, s35, s34")
    for i in range(8):
        for e in range(4): A(f"v_cvt_pk_bf16_f32 v{vK+4*i+e}, v{vO+8*i+2*e}, v{vO+8*i+2*e+1}")
        if i == 4: A(f"s_add_u32 s35, s35, 4096")
        if not nost: A(f"buffer_store_dwordx4 {vr(vK+4*i,4)}, v12, s[44:47], s35 offen offset:{(i%4)*1024} {xst}")
    A("s_lshl_b32 s35, s22, 7"); A("s_lshl_b32 s34, s3, 3"); A("s_add_u32 s35, s35, s34"); A(f"s_add_u32 s35, s35, {FLAGS}")
    A("v_mov_b32 v16, 0")
    A.label("L_sclr")
    A("ds_read_b64 v[14:15], v1 offset:32"); A("s_sub_u32 s25, s25, 1"); A("s_cbranch_scc1 L_end1"); A("s_waitcnt lgkmcnt(0)")
    A("v_readfirstlane_b32 s34, v14")
    A("s_cmp_eq_u32 s34, 0"); A("s_cbranch_scc1 L_sclr")
    A("s_waitcnt vmcnt(0)")
    A("s_mov_b64 exec, 1")
    A(f"buffer_store_dwordx2 v[14:15], v16, s[44:47], s35 offen {xst}")
    A("s_mov_b64 exec, -1")
    A("s_branch L_done")
    for p in polls: A(p)
    for p in stubs: A(p)
    def slow(X, S, Sn):
        A.label(f"L_slow{X}")
        t = (vT, vT + 1); u = (vT + 2, vT + 3)
        for qb in range(2):
            e = [S + 4*(2*kb + qb) + r for kb in range(2) for r in range(4)]
            A(f"v_max3_f32 v{t[qb]}, v{e[0]}, v{e[1]}, v{e[2]}")
            A(f"v_max3_f32 v{t[qb]}, v{t[qb]}, v{e[3]}, v{e[4]}")
            A(f"v_max3_f32 v{t[qb]}, v{t[qb]}, v{e[5]}, v{e[6]}")
            A(f"v_max_f32 v{t[qb]}, v{t[qb]}, v{e[7]}")
        xreduce("v_max_f32", t, u)
        for qb in range(2):
            A(f"v_max_f32 v{t[qb]}, {sFloor}, v{t[qb]}")
            A(f"v_max_f32 v{u[qb]}, 0, v{t[qb]}")
            A(f"v_exp_f32 v{u[qb]}, -v{u[qb]}")
            A(f"v_add_f32 v{vM[qb]}, v{vM[qb]}, v{t[qb]}")
        A(f"s_mov_b32 {sFloor}, 0")
        for i in range(16):
            A(f"v_sub_f32 v{S+i}, v{S+i}, v{t[(i//4)&1]}"); A(f"v_sub_f32 v{Sn+i}, v{Sn+i}, v{t[(i//4)&1]}")
        for kb in range(2):
            for qb in range(2):
                for r in range(4): A(f"v_sub_f32 v{Cn(kb,qb)+r}, 0, v{vM[qb]}")
        for qb in range(2): A(f"v_mul_f32 v{vL[qb]}, v{vL[qb]}, v{u[qb]}")
        for i in range(64): A(f"v_mul_f32 v{vO+i}, v{vO+i}, v{u[(i//4)&1]}")
        A(softmax(S, X))
        A("s_setpc_b64 s[62:63]")
    slow('A', vSA, vSB)
    slow('B', vSB, vSA)
    A.label("L_codeend")
    A('.section .rodata,"a"'); A(".p2align 6")
    A(f".amdhsa_kernel {KNAME}")
    A(".amdhsa_next_free_vgpr 256"); A(".amdhsa_next_free_sgpr 96"); A(".amdhsa_accum_offset 256")
    A(".amdhsa_group_segment_fixed_size 0"); A(".amdhsa_kernarg_size 72"); A(".amdhsa_user_sgpr_count 2")
    A(".amdhsa_user_sgpr_kernarg_segment_ptr 1"); A(".amdhsa_system_sgpr_workgroup_id_x 1")
    A(".end_amdhsa_kernel")
    return A.text()

if __name__ == '__main__':
    kw = eval("dict(%s)" % (sys.argv[2] if len(sys.argv) > 2 else ""))
    open(sys.argv[1], 'w').write(gen(**kw))
```
